```python
import torch

def _softmax(x, axis=-1):
    return torch.softmax(x, dim=axis)
def _gelu(x):
    return torch.nn.functional.gelu(x, approximate="tanh")
def _silu(x):
    return torch.nn.functional.silu(x)
def _sigmoid(x):
    return torch.sigmoid(x)
def _layernorm(x, axis=-1, eps=1e-5):
    m = x.mean(dim=axis, keepdim=True)
    v = x.var(dim=axis, keepdim=True, unbiased=False)
    return (x - m) / torch.sqrt(v + eps)
def _scatter_add(tgt, idx, src, axis=0):
    return tgt.clone().index_add_(axis, idx, src)
def _segment_sum(src, seg, n):
    out = torch.zeros((n,) + src.shape[1:], dtype=src.dtype)
    return out.index_add_(0, seg, src)
def _pad(x, pw):
    flat = tuple(v for pair in reversed(pw) for v in pair)
    return torch.nn.functional.pad(x, flat)

kernel_name = 'standalone__mha_block_cached__near_ridge'

def setup_inputs():

    _w = (lambda a: (lambda t: t.to(torch.bfloat16) if t.is_floating_point() else t)(torch.as_tensor(a)))
    B, Sq, D = 8, 256, 512
    H, Sk, Dh = 32, 1024, 128
    return {
        "x": _w((lambda *s: torch.randn(*s, dtype=torch.bfloat16) * 0.8)(B, Sq, D)),
        "k_cache": _w((lambda *s: torch.randn(*s, dtype=torch.bfloat16) * 0.8)(B, H, Sk, Dh)),
        "v_cache": _w((lambda *s: torch.randn(*s, dtype=torch.bfloat16) * 0.05)(B, H, Sk, Dh)),
        "wq": _w((lambda *s: torch.randn(*s, dtype=torch.bfloat16) * 0.8)(D, H * Dh) * (D ** -0.5)),
        "wo": _w((lambda *s: torch.randn(*s, dtype=torch.bfloat16) * 0.05)(H * Dh, D) * ((H * Dh) ** -0.5)),
    }

def reference(x, k_cache, v_cache, wq, wo):
    B, Sq, D = x.shape
    H, Dh = 32, 128
    q = (lambda x, *d: x.permute(*d))((x @ wq).reshape(B, Sq, H, Dh), 0, 2, 1, 3)
    scores = torch.einsum("bhqd,bhkd->bhqk", q, k_cache) * (Dh ** -0.5)
    p = _softmax(scores, axis=-1)
    o = torch.einsum("bhqk,bhkd->bhqd", p, v_cache)
    return (lambda x, *d: x.permute(*d))(o, 0, 2, 1, 3).reshape(B, Sq, H * Dh) @ wo
```

```python
import re

class Gen:
    def __init__(self):
        self.lines = []
        self.vm = []
        self.lg = []
        self.uid = 0
    def __call__(self, s):
        for l in s.strip("\n").split("\n"):
            l = l.strip()
            if not l:
                continue
            self.lines.append(l if l.endswith(":") else "    " + l)
    def label(self, name):
        self.lines.append(name + ":")
    def comment(self, s):
        self.lines.append("    ; " + s)
    def newlabel(self, base):
        self.uid += 1
        return f"{base}_{self.uid}"
    def vmem(self, s, tag=None):
        self(s)
        self.vm.append(tag)
    def ds(self, s, tag=None):
        self(s)
        self.lg.append(tag)
    def _cnt(self, q, tags):
        idx = -1
        for i, t in enumerate(q):
            if t in tags:
                idx = i
        return idx
    def wait_vm(self, *tags):
        idx = self._cnt(self.vm, tags)
        if idx < 0:
            return
        n = len(self.vm) - 1 - idx
        n = min(n, 63)
        self(f"s_waitcnt vmcnt({n})")
        self.vm = self.vm[len(self.vm) - n:] if n else []
    def wait_lg(self, *tags):
        idx = self._cnt(self.lg, tags)
        if idx < 0:
            return
        n = len(self.lg) - 1 - idx
        n = min(n, 15)
        self(f"s_waitcnt lgkmcnt({n})")
        self.lg = self.lg[len(self.lg) - n:] if n else []
    def wait_all(self, vm=True, lg=True):
        parts = []
        if vm:
            parts.append("vmcnt(0)"); self.vm = []
        if lg:
            parts.append("lgkmcnt(0)"); self.lg = []
        self("s_waitcnt " + " ".join(parts))
    def text(self):
        return "\n".join(self.lines) + "\n"

def vr(base, n=1):
    return f"v{base}" if n == 1 else f"v[{base}:{base+n-1}]"
def ar(base, n=1):
    return f"a{base}" if n == 1 else f"a[{base}:{base+n-1}]"
def sr(base, n=1):
    return f"s{base}" if n == 1 else f"s[{base}:{base+n-1}]"
def rr(idx, n=1):
    return vr(idx, n) if idx < 256 else ar(idx - 256, n)

def interleave(mfmas, streams):
    n = len(mfmas)
    gaps = [[] for _ in range(n)]
    for st in streams:
        items = st["items"]
        if not items:
            continue
        f, l = st["first"], st["last"]
        tot = sum(c for c, _ in items)
        ng = l - f + 1
        acc = 0.0
        for c, e in items:
            g = f + min(ng - 1, int((acc + 0.5 * c) / tot * ng))
            gaps[g].append(e)
            acc += c
    return gaps

REG = re.compile(r"\b([vas])(?:\[(\d+):(\d+)\]|(\d+))")
def regs_of(tok):
    out = set()
    for m in REG.finditer(tok):
        k = m.group(1)
        if m.group(2) is not None:
            lo, hi = int(m.group(2)), int(m.group(3))
        else:
            lo = hi = int(m.group(4))
        for i in range(lo, hi + 1):
            out.add((k, i))
    return out

TRANS = ("v_exp_f32", "v_rcp_f32", "v_log_f32", "v_rsq_f32", "v_sqrt_f32")
def parse(line):
    l = line.split(";")[0].strip()
    if not l or l.endswith(":") or l.startswith("."):
        return None
    parts = l.split(None, 1)
    op = parts[0]
    ops = [o.strip() for o in parts[1].split(",")] if len(parts) > 1 else []
    d = dict(op=op, text=l, w=set(), r=set(), kind="salu")
    if op.startswith("v_mfma"):
        d["kind"] = "mfma"
        d["w"] = regs_of(ops[0]); d["a"] = regs_of(ops[1]); d["b"] = regs_of(ops[2]); d["c"] = regs_of(ops[3])
        d["r"] = d["a"] | d["b"] | d["c"]
    elif op.startswith("v_cmp"):
        d["kind"] = "valu"; d["w"] = regs_of(ops[0]) | ({("vcc", 0)} if ops[0] == "vcc" else set())
        for o in ops[1:]: d["r"] |= regs_of(o)
    elif op.startswith("v_permlane32_swap") or op.startswith("v_permlane16_swap"):
        d["kind"] = "valu"; d["w"] = regs_of(ops[0]) | regs_of(ops[1]); d["r"] = set(d["w"]); d["perm"] = True
    elif op.startswith("v_"):
        d["kind"] = "valu"; d["w"] = regs_of(ops[0])
        for o in ops[1:]: d["r"] |= regs_of(o)
        if "vcc" in ops[1:]: d["r"].add(("vcc", 0))
        if op.startswith("v_fmac") : d["r"] |= d["w"]
    elif op.startswith("ds_read"):
        d["kind"] = "ds"; d["w"] = regs_of(ops[0]); d["r"] = regs_of(ops[1].split()[0])
    elif op.startswith("ds_write"):
        d["kind"] = "ds"
        for o in ops: d["r"] |= regs_of(o.split()[0])
    elif op.startswith("ds_"):
        d["kind"] = "ds"; d["w"] = regs_of(ops[0])
        for o in ops[1:]: d["r"] |= regs_of(o.split()[0])
    elif op.startswith("buffer_load") or op.startswith("global_load"):
        d["kind"] = "vmem"
        if l.endswith(" lds"):
            for o in ops: d["r"] |= regs_of(o.split()[0])
            d["ldsdma"] = True
        else:
            d["w"] = regs_of(ops[0])
            for o in ops[1:]: d["r"] |= regs_of(o.split()[0])
    elif op.startswith("buffer_store") or op.startswith("buffer_atomic") or op.startswith("global_store"):
        d["kind"] = "vmem"
        for o in ops: d["r"] |= regs_of(o.split()[0])
        if op.endswith("x4") or op.endswith("x3"): d["wide_store"] = regs_of(ops[0])
    elif op.startswith("s_"):
        if op in ("s_nop",):
            d["nop"] = int(ops[0], 0) + 1
        elif op.startswith("s_cmp") or op.startswith("s_cbranch") or op in ("s_branch", "s_barrier", "s_waitcnt", "s_endpgm", "s_setprio", "s_sleep"):
            for o in ops: d["r"] |= regs_of(o)
        else:
            if ops:
                d["w"] = regs_of(ops[0]) | ({("m0", 0)} if ops[0] == "m0" else set()) | ({("exec", 0)} if ops[0] == "exec" or "saveexec" in op else set())
            for o in ops[1:]: d["r"] |= regs_of(o)
    return d

def check_hazards(lines, name=""):
    ins = [p for p in (parse(l) for l in lines) if p]
    errs = []
    W = 24
    for j, c in enumerate(ins):
        dist = 0
        for i in range(j - 1, max(-1, j - W - 1), -1):
            p = ins[i]
            need = 0; why = ""
            def ov(a, b): return bool(a & b)
            if p["kind"] == "mfma":
                if c["kind"] == "mfma":
                    if ov(p["w"], c["a"] | c["b"]): need, why = 12, "mfma D -> mfma A/B"
                    elif ov(p["w"], c["c"]) and p["w"] != c["c"]: need, why = 10, "mfma D -> partial C"
                elif c["kind"] in ("valu", "ds", "vmem"):
                    if ov(p["w"], c["r"] | c["w"]): need, why = 12, "mfma D -> valu/mem"
                    if c["kind"] == "valu" and ov(p["c"], c["w"]) and need < 7: need, why = 7, "mfma C WAR"
            elif p["kind"] == "valu":
                vw = {x for x in p["w"] if x[0] in "va"}
                sw = {x for x in p["w"] if x[0] in ("s", "vcc")}
                if c["kind"] == "mfma" and ov(vw, c["r"]): need, why = 2, "valu -> mfma"
                if c.get("perm") and ov(vw, c["r"]): need, why = 2, "valu -> permlane"
                if c["op"].startswith("v_readfirstlane") or c["op"].startswith("v_readlane"):
                    if ov(vw, c["r"]): need, why = max(need, 1), "valu -> readlane"
                if p["op"].startswith(TRANS) and c["kind"] == "valu" and not c["op"].startswith(TRANS) and ov(vw, c["r"]):
                    need, why = max(need, 1), "trans -> valu"
                if c["kind"] == "vmem" and ov(sw, c["r"]): need, why = 5, "valu sgpr -> vmem"
                if c["kind"] == "valu" and ov(sw, c["r"]): need, why = max(need, 2), "valu sgpr -> valu"
            elif p["kind"] == "salu":
                if ("m0", 0) in p["w"] and c.get("ldsdma"): need, why = 1, "m0 -> lds dma"
            elif p["kind"] == "vmem":
                if "wide_store" in p and c["kind"] in ("valu", "mfma", "ds", "vmem") and ov(p["wide_store"], c["w"]): need, why = 2, "store data WAR"
            if need > dist:
                errs.append(f"{name}: [{why}] need {need} have {dist}: '{p['text']}' -> '{c['text']}'")
            dist += p.get("nop", 1)
            if dist >= W: break
    return errs
```

```python
import sys, math, struct
from core import *

KNAME = "standalone__mha_block_cached__near_ridge_kernel"
HEADER = """; Kernarg layout for this problem (64 bytes, ptrs only, base s[0:1]):
"""

K = 1024
KRING_SZ = 80 * K
VRING = 80 * K
XST = 40 * K
WST = 104 * K
def kpos(byte): return byte % KRING_SZ
def vslot(j): return VRING + 16 * K * ((j + 3) % 5)

sWAVE = 3
SX, SWQ, SK, SV, SWO, SWS, SOUT, SDBG, SA, SB = 4, 8, 12, 16, 20, 24, 28, 32, 36, 40
sSOFFA, sSOFFB, sLDSA, sLDSB, sJ, sKD, sVD, sSTEP = 44, 45, 46, 47, 48, 49, 50, 51
sB, sH, sXCD, sI, sRB, sCB = 52, 53, 54, 55, 56, 57
sT0, sT1, sT2, sT3 = 58, 59, 60, 61
sTHR, sC5K, sC5V = 62, 63, 80
sW4K = 81
sXS, sXL = 82, 83
sSC = 84
sEX = 86
sC16K = 66
sOB = 88
sSTAMP = 90

vLANE = 1
vKA = 16
vTA = 24
vXA = 28
vOA = 32
vOB = 36
vRO = 40
vL = 44
vLS = 46
vCK = 48
vT = 52
NT = 12
def P(par, qt): return 64 + 16 * par + 8 * qt
def NEGM(qt): return 96 + 16 * qt
def S(par, qt): return 128 + 32 * par + 16 * qt
def Q(qt, s): return 192 + 32 * qt + 4 * s
def QACC(qt, t): return 128 + 64 * qt + 16 * t
def O(qt, t): return 64 * qt + 16 * t
def KF(s): return 128 + 4 * s
def VF(u, t): return 160 + 16 * u + 4 * t
def WF(st, ks, t): return 128 + 32 * st + 16 * ks + 4 * t
def XF(st, ks, qt): return 192 + 32 * st + 8 * ks + 4 * qt

WS_FLAGS = 16 * K * K
WS_STAMP = 32 * K * K
WS_QDUMP = 64 * K * K
FLAG_STRIDE = 128
SPIN_MAX = 400000

MF = "v_mfma_f32_32x32x16_bf16"
def f32bits(x): return struct.unpack("<I", struct.pack("<f", x))[0]

class Cfg:
    diag = False
    qdump = False
    thr = 4096.0
    pre = 18
    nt_kv = True
    touch = True

def stamp(g, cfg, idx):
    if cfg.diag:
        g(f"s_memrealtime s[{sSTAMP+2*idx}:{sSTAMP+2*idx+1}]")

def srd(g, d, lo, hi, size, off=None):
    if off is None:
        g(f"s_mov_b32 s{d}, s{lo}\ns_mov_b32 s{d+1}, s{hi}")
    else:
        g(f"s_add_u32 s{d}, s{lo}, {off}\ns_addc_u32 s{d+1}, s{hi}, 0")
    g(f"s_mov_b32 s{d+2}, {size}\ns_mov_b32 s{d+3}, 0x20000")

def dma_group(g, srdreg, vregs, soff, tag, nt):
    for n in range(4):
        g.vmem(f"buffer_load_dwordx4 v{vregs[n]}, s[{srdreg}:{srdreg+3}], s{soff} offen offset:{1024*n}{' nt' if nt else ''} lds", tag)

def setup(g, cfg):
    g(f"""
    s_cmp_ge_u32 s2, 256
    s_cbranch_scc1 L_end
    s_load_dwordx16 s[64:79], s[0:1], 0
    """)
    stamp(g, cfg, 0)
    g(f"""
    v_lshrrev_b32 v2, 6, v0
    v_and_b32 v{vLANE}, 63, v0
    v_readfirstlane_b32 s{sWAVE}, v2
    s_and_b32 s{sXCD}, s2, 7
    s_lshr_b32 s{sI}, s2, 3
    s_and_b32 s{sRB}, s{sI}, 3
    s_lshr_b32 s{sCB}, s{sI}, 2
    s_and_b32 s{sT0}, s{sXCD}, 1
    s_lshl_b32 s{sT0}, s{sT0}, 2
    s_add_u32 s{sB}, s{sT0}, s{sRB}
    s_lshr_b32 s{sT0}, s{sXCD}, 1
    s_lshl_b32 s{sT0}, s{sT0}, 3
    s_add_u32 s{sH}, s{sT0}, s{sCB}
    s_lshl_b32 s{sW4K}, s{sWAVE}, 12
    """)
    g(f"""
    v_and_b32 v2, 15, v{vLANE}
    v_lshrrev_b32 v3, 4, v{vLANE}
    v_lshrrev_b32 v4, 5, v{vLANE}
    v_lshrrev_b32 v5, 3, v{vLANE}
    v_and_b32 v6, 7, v{vLANE}
    v_bfe_u32 v7, v{vLANE}, 2, 2
    """)
    g(f"""
    v_xor_b32 v8, v2, v3
    v_lshlrev_b32 v8, 4, v8
    v_lshl_add_u32 v{vOA}, v3, 8, v8
    v_xor_b32 v{vOA+1}, 64, v{vOA}
    v_xor_b32 v{vOA+2}, 0x80, v{vOA}
    v_xor_b32 v{vOA+3}, 0xc0, v{vOA}
    v_lshlrev_b32 v8, 2, v3
    v_xor_b32 v8, v2, v8
    v_lshlrev_b32 v9, 4, v8
    v_lshl_add_u32 v{vOB}, v3, 8, v9
    v_mov_b32 v{vOB+1}, v{vOB}
    v_mov_b32 v{vOB+2}, v{vOB}
    v_mov_b32 v{vOB+3}, v{vOB}
    """)
    g("s_waitcnt lgkmcnt(0)")
    srd(g, SX, 64, 65, 2 * K * K)
    srd(g, SWQ, 70, 71, 4 * K * K)
    g(f"s_lshl_b32 s{sT0}, s{sB}, 5\ns_add_u32 s{sT0}, s{sT0}, s{sH}\ns_lshl_b32 s{sT1}, s{sT0}, 18")
    srd(g, SK, 66, 67, 256 * K, f"s{sT1}")
    srd(g, SV, 68, 69, 256 * K, f"s{sT1}")
    srd(g, SWO, 72, 73, 4 * K * K)
    srd(g, SWS, 78, 79, 128 * K * K)

def setup_late(g, cfg):
    srd(g, SOUT, 74, 75, 2 * K * K)
    srd(g, SDBG, 76, 77, 256)
    for i in range(4):
        g(f"s_mov_b32 s{SA+i}, s{SK+i}\ns_mov_b32 s{SB+i}, s{SV+i}")
    g(f"""
    v_and_b32 v10, 0x13, v{vLANE}
    v_and_b32 v11, 4, v{vLANE}
    v_lshl_or_b32 v10, v11, 1, v10
    v_and_b32 v11, 8, v{vLANE}
    v_lshrrev_b32 v11, 1, v11
    v_or_b32 v10, v10, v11
    v_and_b32 v11, 15, v10
    v_xor_b32 v11, v11, v4
    v_lshlrev_b32 v11, 4, v11
    v_lshl_add_u32 v{vKA}, v10, 8, v11
    """)
    for s in range(1, 8):
        g(f"v_xor_b32 v{vKA+s}, {s<<5}, v{vKA}")
    g(f"""
    v_and_b32 v12, 1, v{vLANE}
    v_lshlrev_b32 v12, 4, v12
    v_and_b32 v13, 2, v{vLANE}
    v_lshl_or_b32 v12, v13, 2, v12
    v_and_b32 v13, 16, v{vLANE}
    v_lshl_or_b32 v12, v13, 1, v12
    v_lshl_add_u32 v13, v4, 3, v7
    v_lshl_add_u32 v14, v13, 8, v12
    v_lshl_add_u32 v14, v7, 6, v14
    v_add_u32 v{vTA}, {WST}, v14
    """)
    for t in range(1, 4):
        g(f"v_xor_b32 v{vTA+t}, {t<<6}, v{vTA}")
    g(f"""
    v_and_b32 v14, 31, v{vLANE}
    v_bfe_u32 v15, v{vLANE}, 1, 3
    v_xor_b32 v15, v15, v4
    v_lshlrev_b32 v15, 4, v15
    v_lshl_add_u32 v14, v14, 7, v15
    s_lshl_b32 s{sT0}, s{sWAVE}, 13
    s_add_u32 s{sT0}, s{sT0}, {XST}
    v_add_u32 v{vXA}, s{sT0}, v14
    """)
    for ks in range(1, 4):
        g(f"v_xor_b32 v{vXA+ks}, {ks<<5}, v{vXA}")
    g(f"s_mov_b32 s{sTHR}, {f32bits(cfg.thr):#x}")
    g(f"s_mov_b32 s{sSC}, {f32bits(math.log2(math.e) / math.sqrt(128.0)):#x}")
    g(f"s_mov_b32 s{sSC+1}, s{sSC}")
    for i in range(128):
        g(f"v_accvgpr_write_b32 a{i}, 0")
    g(f"v_mov_b32 v{vL}, 0\nv_mov_b32 v{vL+1}, 0")

def flag_zero(g):
    g(f"""
    s_lshl_b32 s{sT0}, s{sB}, 2
    s_add_u32 s{sT0}, s{sT0}, s{sWAVE}
    s_lshl_b32 s{sT0}, s{sT0}, 5
    s_add_u32 s{sT0}, s{sT0}, s{sH}
    s_mul_i32 s{sT0}, s{sT0}, {FLAG_STRIDE}
    s_add_u32 s{sOB+1}, s{sT0}, {WS_FLAGS}
    v_mov_b32 v10, 0
    s_mov_b64 exec, 1
    """)
    g.vmem(f"buffer_store_dword v10, v10, s[{SWS}:{SWS+3}], s{sOB+1} offen sc1", "fz")
    g("s_mov_b64 exec, -1")

def touches(g, cfg):
    if not cfg.touch:
        return
    g(f"""
    s_and_b32 s{sT0}, s{sXCD}, 1
    s_lshl_b32 s{sT0}, s{sT0}, 20
    s_lshl_b32 s{sT1}, s{sI}, 15
    s_add_u32 s{sT0}, s{sT0}, s{sT1}
    s_lshl_b32 s{sT1}, s{sWAVE}, 13
    s_add_u32 s{sT0}, s{sT0}, s{sT1}
    v_lshlrev_b32 v10, 7, v{vLANE}
    s_lshl_b32 s{sT1}, s{sI}, 17
    s_lshl_b32 s{sT2}, s{sWAVE}, 15
    s_add_u32 s{sT1}, s{sT1}, s{sT2}
    s_lshr_b32 s{sT2}, s{sXCD}, 1
    s_lshl_b32 s{sT2}, s{sT2}, 11
    s_add_u32 s{sT1}, s{sT1}, s{sT2}
    v_lshlrev_b32 v11, 7, v2
    v_lshl_add_u32 v11, v3, 13, v11
    """)
    g.vmem(f"buffer_load_dword v{vT}, v10, s[{SX}:{SX+3}], s{sT0} offen", "touch")
    g.vmem(f"buffer_load_dword v{vT+1}, v11, s[{SWQ}:{SWQ+3}], s{sT1} offen", "touch")

def kv_group(g, cfg, kind, byte, tag, wavedep=None):
    if kind == "K":
        lds = kpos(byte); srdreg = SK; vregs = [vOA + n for n in range(4)]
    else:
        lds = vslot(byte // 16384) + byte % 16384; srdreg = SV; vregs = [vOB + n for n in range(4)]
    if wavedep is None:
        g(f"s_mov_b32 m0, {lds}\ns_mov_b32 s{sT0}, {byte}")
    else:
        g(f"s_add_u32 m0, s{wavedep}, {lds}\ns_add_u32 s{sT0}, s{wavedep}, {byte}")
    dma_group(g, srdreg, vregs, sT0, tag, cfg.nt_kv)

def x_group(g, c, half, grp):
    g(f"s_add_u32 m0, s{sXL}, {XST + (c % 2) * 32768 + half * 16384 + grp * 4096}")
    g(f"s_add_u32 s{sT0}, s{sXS}, {half * 131072 + grp * 32768 + c * 128}")
    dma_group(g, SX, [vRO + n for n in range(4)], sT0, f"x{c}", False)

def w_group(g, k, grp):
    g(f"s_mov_b32 m0, {WST + (k % 3) * 8192 + grp * 4096}")
    g(f"s_add_u32 s{sT0}, s{sXS}, {k * 262144 + grp * 131072}")
    dma_group(g, SWQ, [vRO + n for n in range(4)], sT0, f"w{k}", False)

class Rec(Gen):
    def __init__(self):
        super().__init__(); self.items = []
    def __call__(self, s):
        for l in s.strip("\n").split("\n"):
            l = l.strip()
            if l: self.items.append(("i", l, None))
    def vmem(self, s, tag=None): self.items.append(("v", s, tag))
    def ds(self, s, tag=None): self.items.append(("d", s, tag))
    def atom(self, s): self.items.append(("i", s.strip(), None))

def play(g, it):
    k, s, tag = it
    if k == "i": g(s)
    elif k == "v": g.vmem(s, tag)
    else: g.ds(s, tag)

def cost_of(it):
    k, s, _ = it
    if k == "v": return 16
    if k == "d": return 4
    if s.startswith("v_exp"): return 8
    if s.startswith("s_"): return 2 * (s.count("\n") + 1)
    return 4

def emit_block(g, mfmas, streams):
    gaps = interleave(mfmas, [dict(items=[(cost_of(it), it) for it in its], first=f, last=l) for its, f, l in streams])
    for m, gap in zip(mfmas, gaps):
        g(m)
        for it in gap:
            play(g, it)

def kfrag_reads(off):
    r = Rec()
    for s in range(8):
        r.ds(f"ds_read_b128 {ar(KF(s),4)}, v{vKA+s} offset:{off}", "kf")
    return r.items

def vfrag_reads(sub):
    r = Rec()
    for u in range(2):
        for t in range(4):
            for hf in range(2):
                r.ds(f"ds_read_b64_tr_b16 {ar(VF(u,t)+2*hf,2)}, v{vTA+t} offset:{sub*8192 + (16*u+4*hf)*256}", "vf")
    return r.items

def qproj(g, cfg, role):
    g.vm = []; g.lg = []
    if role == "X":
        g(f"""
        v_xor_b32 v8, v6, v3
        v_lshlrev_b32 v8, 4, v8
        v_lshl_add_u32 v{vRO}, v5, 10, v8
        v_xor_b32 v8, 64, v{vRO}
        v_add_u32 v{vRO+1}, 7168, v8
        v_add_u32 v{vRO+2}, {2*7168}, v{vRO}
        v_add_u32 v{vRO+3}, {3*7168}, v8
        s_lshl_b32 s{sXS}, s{sB}, 18
        s_lshl_b32 s{sT0}, s{sWAVE}, 16
        s_add_u32 s{sXS}, s{sXS}, s{sT0}
        s_lshl_b32 s{sXL}, s{sWAVE}, 13
        """)
        for half in range(2):
            for grp in range(2):
                x_group(g, 0, half, grp)
        touches(g, cfg)
        for half in range(2):
            for grp in range(2):
                x_group(g, 1, half, grp)
        flag_zero(g)
    elif role == "W":
        g(f"""
        v_lshl_add_u32 v{vRO}, v3, 13, v9
        v_add_u32 v{vRO+1}, 31744, v{vRO}
        v_add_u32 v{vRO+2}, {2*31744}, v{vRO}
        v_add_u32 v{vRO+3}, {3*31744}, v{vRO}
        s_lshl_b32 s{sXS}, s{sH}, 8
        """)
        for grp in range(2): w_group(g, 0, grp)
        touches(g, cfg)
        for k in (1, 2):
            for grp in range(2): w_group(g, k, grp)
        flag_zero(g)
    else:
        touches(g, cfg)
        flag_zero(g)
        for q in range(6): kv_group(g, cfg, "K", 4096 * q, "kv")
        for q in range(4): kv_group(g, cfg, "V", 4096 * q, "kv")
        for q in range(6, 10): kv_group(g, cfg, "K", 4096 * q, "kv")
        if cfg.touch:
            g(f"v_lshlrev_b32 v10, 7, v{vLANE}\ns_lshl_b32 s{sT0}, s2, 14\ns_add_u32 s{sT1}, s{sT0}, 8192")
            g.vmem(f"buffer_load_dword v{vT+2}, v10, s[{SWO}:{SWO+3}], s{sT0} offen", "touch")
            g.vmem(f"buffer_load_dword v{vT+3}, v10, s[{SWO}:{SWO+3}], s{sT1} offen", "touch")
    setup_late(g, cfg)
    for h in range(-1, 16):
        g.comment(f"---- H({h}) role {role}")
        if role == "X":
            if h % 2 == 1 and (h + 1) // 2 <= 7: g.wait_vm(f"x{(h+1)//2}")
        elif role == "W":
            if h + 1 <= 15: g.wait_vm(f"w{h+1}")
        else:
            if h == 15: g.wait_all(vm=True, lg=False)
        if h >= 0: g.wait_all(vm=False, lg=True)
        g("s_barrier")
        if h == -1: stamp(g, cfg, 1)
        rd = Rec()
        if h % 2 == 1 and (h + 1) // 2 <= 7:
            c = (h + 1) // 2
            for ks in range(4):
                for qt in range(2):
                    rd.ds(f"ds_read_b128 {ar(XF(c%2,ks,qt),4)}, v{vXA+ks} offset:{(c%2)*32768 + qt*4096}")
        xr = rd.items
        rd = Rec()
        if h + 1 <= 15:
            k = h + 1
            for ks in range(2):
                for t in range(4):
                    for hf in range(2):
                        rd.ds(f"ds_read_b64_tr_b16 {ar(WF(k%2,ks,t)+2*hf,2)}, v{vTA+t} offset:{(k%3)*8192 + (16*ks+4*hf)*256}")
        else:
            rd.items = kfrag_reads(0)
        wr = rd.items
        dm = Rec()
        if h >= 0:
            if role == "X":
                if h <= 11:
                    for grp in range(2): x_group(dm, h // 2 + 2, h % 2, grp)
                else:
                    kind, pair = [("K", 2), ("K", 3), ("V", 2), ("V", 3)][h - 12]
                    base = pair * 16384 + (8192 if kind == "K" else 0)
                    for grp in range(2): kv_group(dm, cfg, kind, base + grp * 4096, "kv", wavedep=sXL)
            elif role == "W":
                if h <= 12:
                    for grp in range(2): w_group(dm, h + 3, grp)
            else:
                if h in (1, 2):
                    for grp in range(2): kv_group(dm, cfg, "V", 16384 + (h - 1) * 8192 + grp * 4096, "kv")
        if h == -1:
            for it in wr[:4] + xr[:2] + wr[4:] + xr[2:]: play(g, it)
            continue
        c = h // 2
        mf = []
        for ks in range(2):
            order = [(qt, t) for t in range(4) for qt in range(2)]
            if h == 15 and ks == 1:
                order = [(1, 3), (1, 2), (1, 1), (1, 0), (0, 3), (0, 2), (0, 1), (0, 0)]
            for qt, t in order:
                cc = "0" if (h == 0 and ks == 0) else vr(QACC(qt, t), 16)
                mf.append(f"{MF} {vr(QACC(qt,t),16)}, {ar(WF(h%2,ks,t),4)}, {ar(XF(c%2, 2*(h%2)+ks, qt),4)}, {cc}")
        emit_block(g, mf, [(xr + wr, 0, 12), (dm.items, 0, 14)])
    g(f"s_branch L_qdone")

def softmax_items(par):
    r = Rec()
    seq = [(qt, k) for qt in range(2) for k in range(16)]
    def T(i): return vT + (i % NT)
    def post(pi):
        qt, k = seq[2 * pi]
        a, b = T(2 * pi), T(2 * pi + 1)
        if k == 0:
            return [f"v_add_f32 v{vLS+qt}, v{a}, v{b}", None, f"v_cvt_pk_bf16_f32 v{P(par,qt)+k//2}, v{a}, v{b}"]
        return [f"v_add_f32 v{vLS+qt}, v{vLS+qt}, v{a}", f"v_add_f32 v{vLS+qt}, v{vLS+qt}, v{b}", f"v_cvt_pk_bf16_f32 v{P(par,qt)+k//2}, v{a}, v{b}"]
    for pi in range(17):
        pp = post(pi - 1) if pi > 0 else [None, None, None]
        for e in range(2):
            if pi < 16:
                qt, k = seq[2 * pi + e]
                r(f"v_exp_f32 v{T(2*pi+e)}, v{S(par,qt)+k}")
            elif e == 0:
                r("s_nop 0")
            if pp[e]: r(pp[e])
        if pp[2]: r(pp[2])
    return r.items

def check_items(site):
    r = Rec()
    r(f"v_add_f32 v{vCK}, v{vLS}, v{vLS+1}")
    r(f"v_cmp_nge_f32 vcc, s{sTHR}, v{vCK}")
    r.atom(f"s_cbranch_vccnz L_fb_{site}\nL_fbret_{site}:")
    r(f"v_add_f32 v{vL}, v{vL}, v{vLS}")
    r(f"v_add_f32 v{vL+1}, v{vL+1}, v{vLS+1}")
    return r.items

def qk_mfmas(par, first_c=None):
    mf = []
    for s in range(8):
        for qt in range(2):
            c = vr(S(par, qt), 16) if s else (first_c if first_c is not None else vr(NEGM(qt), 16))
            mf.append(f"{MF} {vr(S(par,qt),16)}, {ar(KF(s),4)}, {vr(Q(qt,s),4)}, {c}")
    return mf

def pv_mfmas(par):
    mf = []
    for u in range(2):
        for t in range(4):
            for qt in range(2):
                mf.append(f"{MF} {ar(O(qt,t),16)}, {ar(VF(u,t),4)}, {vr(P(par,qt)+4*u,4)}, {ar(O(qt,t),16)}")
    return mf

SM_SPLIT = 38

def rowmax(g, src, dst, tmp):
    g(f"v_max3_f32 v{dst}, v{src}, v{src+1}, v{src+2}")
    g(f"v_max3_f32 v{tmp}, v{src+3}, v{src+4}, v{src+5}")
    for k in (6, 10):
        g(f"v_max3_f32 v{dst}, v{dst}, v{src+k}, v{src+k+1}")
        g(f"v_max3_f32 v{tmp}, v{tmp}, v{src+k+2}, v{src+k+3}")
    g(f"v_max3_f32 v{dst}, v{dst}, v{src+14}, v{src+15}")
    g(f"v_max_f32 v{dst}, v{dst}, v{tmp}")
    g(f"v_mov_b32 v{tmp}, v{dst}")
    g("s_nop 1")
    g(f"v_permlane32_swap_b32 v{dst}, v{tmp}")
    g(f"v_max_f32 v{dst}, v{dst}, v{tmp}")

def loop_dma_items(cfg):
    r = Rec()
    r(f"s_mov_b32 m0, s{sLDSA}")
    r(f"s_add_u32 s{sLDSA}, s{sLDSA}, 16384")
    dma_group(r, SA, [vOA + n for n in range(4)], sSOFFA, "d", cfg.nt_kv)
    r(f"s_mov_b32 m0, s{sLDSB}")
    r(f"s_add_u32 s{sLDSB}, s{sLDSB}, 16384")
    dma_group(r, SB, [vOB + n for n in range(4)], sSOFFB, "d", cfg.nt_kv)
    r(f"s_add_u32 s{sSOFFA}, s{sSOFFA}, s{sSTEP}")
    r(f"s_add_u32 s{sSOFFB}, s{sSOFFB}, s{sSTEP}")
    r.atom(f"s_sub_u32 s{sT0}, s{sLDSA}, {KRING_SZ}\ns_cselect_b32 s{sLDSA}, s{sLDSA}, s{sT0}")
    r.atom(f"s_cmp_ge_u32 s{sLDSB}, {VRING + 80*K}\ns_cselect_b32 s{sT0}, {80*K}, 0\ns_sub_u32 s{sLDSB}, s{sLDSB}, s{sT0}")
    return r.items

def ring_step_items(sC5, sD, base, n):
    r = Rec()
    r.atom(f"s_add_u32 s{sC5}, s{sC5}, 1\ns_cmp_eq_u32 s{sC5}, 5\ns_cselect_b32 s{sD}, {(-65536) & 0xffffffff:#x}, s{sC16K}\ns_cselect_b32 s{sC5}, 0, s{sC5}")
    for i in range(n):
        r(f"v_add_u32 v{base+i}, s{sD}, v{base+i}")
    return r.items

def attention(g, cfg):
    g.label("L_qdone")
    stamp(g, cfg, 2)
    g("s_nop 7")
    for p in range(63, -1, -1):
        src = 128 + 2 * p
        if p == 31: g("s_nop 7")
        g(f"v_pk_mul_f32 v[{src}:{src+1}], v[{src}:{src+1}], s[{sSC}:{sSC+1}]")
        if p < 63:
            g(f"v_cvt_pk_bf16_f32 v{192+p+1}, v{src+2}, v{src+3}")
    g(f"v_cvt_pk_bf16_f32 v192, v128, v129")
    if cfg.qdump:
        g(f"""
        s_lshl_b32 s{sT0}, s{sB}, 5
        s_add_u32 s{sT0}, s{sT0}, s{sH}
        s_lshl_b32 s{sT0}, s{sT0}, 2
        s_add_u32 s{sT0}, s{sT0}, s{sWAVE}
        s_lshl_b32 s{sT0}, s{sT0}, 14
        s_add_u32 s{sT0}, s{sT0}, {WS_QDUMP}
        v_lshlrev_b32 v10, 4, v{vLANE}
        """)
        for f in range(16):
            if f % 4 == 0 and f: g(f"s_add_u32 s{sT0}, s{sT0}, 4096")
            g(f"buffer_store_dwordx4 v[{192+4*f}:{195+4*f}], v10, s[{SWS}:{SWS+3}], s{sT0} offen offset:{1024*(f%4)}")
        g("s_waitcnt vmcnt(0)")
    g(f"""
    s_mov_b32 s{sJ}, 0
    s_mov_b32 s{sC5K}, 0
    s_mov_b32 s{sC5V}, 3
    s_mov_b32 s{sSTEP}, 16384
    s_mov_b32 s{sC16K}, 16384
    s_add_u32 s{sSOFFA}, s{sW4K}, {(64*4+32)*256}
    s_add_u32 s{sSOFFB}, s{sW4K}, {64*4*256}
    s_add_u32 s{sLDSA}, s{sW4K}, {72*K}
    s_sub_u32 s{sT0}, s{sLDSA}, {KRING_SZ}
    s_cselect_b32 s{sLDSA}, s{sLDSA}, s{sT0}
    s_add_u32 s{sLDSB}, s{sW4K}, {vslot(4)}
    """)
    for t in range(4):
        g(f"v_add_u32 v{vTA+t}, {vslot(0) - WST}, v{vTA+t}")
    g("s_waitcnt lgkmcnt(0)")
    g("s_barrier")
    g(f"""
    s_cmp_eq_u32 s{sWAVE}, 2
    s_cbranch_scc0 L_noinit
    s_lshl_b32 s{sT0}, s{sB}, 5
    v_mov_b32 v10, 0
    v_mov_b32 v11, 1
    s_mov_b64 exec, 1
    buffer_atomic_add v11, v10, s[{SDBG}:{SDBG+3}], s{sT0} offen sc1
    s_mov_b64 exec, -1
    """)
    g.label("L_noinit")
    mf = qk_mfmas(0, first_c="0")
    kr = kfrag_reads(8192)
    dm = loop_dma_items(cfg)
    gaps = interleave(mf, [dict(items=[(cost_of(it), it) for it in dm], first=0, last=14)])
    for i, m in enumerate(mf):
        g(m)
        if i % 2 == 1: play(g, kr[i // 2])
        for it in gaps[i]: play(g, it)
    g("s_nop 11")
    for qt in range(2):
        rowmax(g, S(0, qt), vT + 2 * qt, vT + 2 * qt + 1)
    for qt in range(2):
        for k in range(16):
            g(f"v_sub_f32 v{S(0,qt)+k}, v{S(0,qt)+k}, v{vT+2*qt}")
            g(f"v_sub_f32 v{NEGM(qt)+k}, 0, v{vT+2*qt}")
    sm0 = softmax_items(0); sm1 = softmax_items(1)
    for it in sm0[:SM_SPLIT]: play(g, it)
    g("s_branch L_blk1")

    g(".p2align 6")
    g.label("L_loop")
    g("s_waitcnt vmcnt(24) lgkmcnt(0)")
    g("s_barrier")
    g(f"s_cmp_eq_u32 s{sJ}, 12\ns_cbranch_scc1 L_switch")
    g.label("L_switchret")
    dm = loop_dma_items(cfg)
    emit_block(g, pv_mfmas(1), [(kfrag_reads(8192), 0, 9), (ring_step_items(sC5V, sVD, vTA, 4), 0, 2), (dm, 1, 15), (sm0[:SM_SPLIT], 3, 15)])
    g.label("L_blk1")
    g("s_waitcnt lgkmcnt(0)")
    emit_block(g, qk_mfmas(1), [(vfrag_reads(0), 0, 11), (ring_step_items(sC5K, sKD, vKA, 8), 12, 15), (sm0[SM_SPLIT:], 0, 12), (check_items("a"), 13, 14)])
    g("s_waitcnt lgkmcnt(0)")
    emit_block(g, pv_mfmas(0), [(kfrag_reads(0), 0, 5), (sm1[:SM_SPLIT], 4, 15)])
    g(f"s_cmp_eq_u32 s{sJ}, 15\ns_cbranch_scc1 L_loopexit")
    g("s_waitcnt lgkmcnt(0)")
    tail = Rec(); tail(f"s_add_u32 s{sJ}, s{sJ}, 1")
    emit_block(g, qk_mfmas(0), [(vfrag_reads(1), 0, 11), (sm1[SM_SPLIT:], 0, 12), (check_items("b"), 13, 14), (tail.items, 15, 15)])
    g("s_branch L_loop")

    g.label("L_loopexit")
    for it in vfrag_reads(1): play(g, it)
    for it in sm1[SM_SPLIT:]: play(g, it)
    for it in check_items("c"): play(g, it)
    g("s_waitcnt lgkmcnt(0)")
    for m in pv_mfmas(1): g(m)

def wo_switch(g, cfg):
    g.label("L_switch")
    for i in range(4):
        g(f"s_mov_b32 s{SA+i}, s{SWO+i}\ns_mov_b32 s{SB+i}, s{SWO+i}")
    g(f"""
    v_lshrrev_b32 v2, 3, v{vLANE}
    v_and_b32 v3, 7, v{vLANE}
    v_bfe_u32 v4, v{vLANE}, 4, 1
    v_lshlrev_b32 v4, 2, v4
    v_xor_b32 v3, v3, v4
    v_lshlrev_b32 v3, 4, v3
    v_lshl_add_u32 v{vOA}, v2, 10, v3
    v_add_u32 v{vOA+1}, 7168, v{vOA}
    v_add_u32 v{vOA+2}, {2*7168}, v{vOA}
    v_add_u32 v{vOA+3}, {3*7168}, v{vOA}
    v_mov_b32 v{vOB}, v{vOA}
    v_mov_b32 v{vOB+1}, v{vOA+1}
    v_mov_b32 v{vOB+2}, v{vOA+2}
    v_mov_b32 v{vOB+3}, v{vOA+3}
    s_lshl_b32 s{sSOFFA}, s{sWAVE}, 20
    s_lshl_b32 s{sT0}, s{sCB}, 7
    s_add_u32 s{sSOFFA}, s{sSOFFA}, s{sT0}
    s_mov_b32 s{sXS}, s{sSOFFA}
    s_add_u32 s{sSOFFB}, s{sSOFFA}, 32768
    s_mov_b32 s{sSTEP}, 65536
    s_branch L_switchret
    """)

def fallback(g, site, par):
    g.label(f"L_fb_{site}")
    g("s_nop 15\ns_nop 15")
    d, t, f = 2, 3, 4
    for qt in range(2):
        rowmax(g, S(par, qt), d, t)
        g(f"v_max_f32 v{d}, 0, v{d}")
        g(f"v_sub_f32 v{f}, 0, v{d}")
        g(f"v_exp_f32 v{f}, v{f}")
        for k in range(16):
            g(f"v_sub_f32 v{NEGM(qt)+k}, v{NEGM(qt)+k}, v{d}")
            g(f"v_sub_f32 v{S(par,qt)+k}, v{S(par,qt)+k}, v{d}")
            g(f"v_sub_f32 v{S(par^1,qt)+k}, v{S(par^1,qt)+k}, v{d}")
        g(f"v_mul_f32 v{vL+qt}, v{vL+qt}, v{f}")
        for k in range(0, 64, 4):
            for i in range(4): g(f"v_accvgpr_read_b32 v{vT+i}, a{64*qt+k+i}")
            for i in range(4): g(f"v_mul_f32 v{vT+i}, v{vT+i}, v{f}")
            for i in range(4): g(f"v_accvgpr_write_b32 a{64*qt+k+i}, v{vT+i}")
    for it in softmax_items(par): play(g, it)
    g("s_nop 3")
    g(f"s_branch L_fbret_{site}")

vWA = 16
vOL = 24
vFL = 25
def wo_pos(i):
    m = i // 2
    if i % 2 == 0:
        pos = (16 * K * (16 + m) + 8 * K) % KRING_SZ
        if pos == 72 * K: return 3, 0, None
        return 0, pos, pos
    pos = vslot(16 + m)
    if pos == 144 * K: return 2, 0, pos
    return 1, pos - 80 * K, pos

def tail(g, cfg):
    ACC = 192
    def acc(nt, qt): return ACC + 32 * nt + 16 * qt
    g.vm = [f"wo{i}" for i in range(8) for _ in range(4)]
    g.lg = []
    stamp(g, cfg, 3)
    g(f"""
    v_lshrrev_b32 v4, 5, v{vLANE}
    v_bfe_u32 v7, v{vLANE}, 2, 2
    v_lshl_add_u32 v13, v4, 3, v7
    v_lshl_add_u32 v14, v13, 7, v12
    v_lshrrev_b32 v7, 1, v7
    v_lshl_add_u32 v14, v7, 6, v14
    v_add_u32 v{vWA}, s{sW4K}, v14
    v_add_u32 v{vWA+2}, {80*K}, v{vWA}
    v_add_u32 v{vWA+4}, {144*K}, v{vWA}
    s_add_u32 s{sXL}, s{sW4K}, {72*K}
    s_sub_u32 s{sT0}, s{sXL}, {KRING_SZ}
    s_cselect_b32 s{sXL}, s{sXL}, s{sT0}
    v_add_u32 v{vWA+6}, s{sXL}, v14
    """)
    for st in range(4):
        g(f"v_xor_b32 v{vWA+2*st+1}, 64, v{vWA+2*st}")
    g(f"v_lshlrev_b32 v{vOL}, 4, v{vLANE}")
    g(f"s_lshl_b32 s{sT1}, s{sXCD}, 5\nv_mov_b32 v10, 0")
    for qt in range(2):
        g(f"v_mov_b32 v{vT+qt}, v{vL+qt}")
    g("s_nop 1")
    for qt in range(2):
        g(f"v_permlane32_swap_b32 v{vL+qt}, v{vT+qt}")
    for qt in range(2):
        g(f"v_add_f32 v{vL+qt}, v{vL+qt}, v{vT+qt}")
    g(f"v_rcp_f32 v{vLS}, v{vL}\nv_rcp_f32 v{vCK}, v{vL+1}")
    inv = [vLS, vCK]
    g(f"""
    s_lshl_b32 s{sT0}, s{sB}, 5
    s_add_u32 s{sT0}, s{sT0}, s{sH}
    s_lshl_b32 s{sT0}, s{sT0}, 16
    s_lshl_b32 s{sT2}, s{sWAVE}, 14
    s_add_u32 s{sT0}, s{sT0}, s{sT2}
    """)
    g("s_barrier")
    def wo_dma(blk):
        st, imm, pos = wo_pos(blk % 10)
        if pos is None: g(f"s_mov_b32 m0, s{sXL}")
        else: g(f"s_add_u32 m0, s{sW4K}, {pos}")
        g(f"s_add_u32 s{sT3}, s{sXS}, {blk * 32768}")
        dma_group(g, SWO, [vOA + n for n in range(4)], sT3, f"wo{blk}", False)
    wo_dma(8); wo_dma(9)
    for f in range(16):
        qt, ks = f // 8, f % 8
        src = O(qt, ks // 2) + 8 * (ks % 2)
        tmp = 128 + 8 * (f % 4)
        dst = 96 + 4 * (f % 8)
        for i in range(8): g(f"v_accvgpr_read_b32 v{tmp+i}, a{src+i}")
        for i in range(0, 8, 2): g(f"v_pk_mul_f32 v[{tmp+i}:{tmp+i+1}], v[{tmp+i}:{tmp+i+1}], v[{inv[qt]}:{inv[qt]+1}] op_sel_hi:[1,0]")
        for i in range(0, 8, 2): g(f"v_cvt_pk_bf16_f32 v{dst+i//2}, v{tmp+i}, v{tmp+i+1}")
        if f % 4 == 0 and f: g(f"s_add_u32 s{sT0}, s{sT0}, 4096")
        g.vmem(f"buffer_store_dwordx4 v[{dst}:{dst+3}], v{vOL}, s[{SWS}:{SWS+3}], s{sT0} offen offset:{1024*(f%4)} sc1", "ost")
    g.vmem(f"buffer_load_dword v{vFL}, v10, s[{SDBG}:{SDBG+3}], s{sT1} offen sc1", "cnt")

    free = [256 + 4 * i for i in range(64)] + [64 + 4 * i for i in range(8)]
    free_o = [128 + 4 * i for i in range(16)] + [96 + 4 * i for i in range(8)]
    W = {}
    def wo_read(blk, pool):
        st, imm, pos = wo_pos(blk % 10)
        its = Rec()
        for ks in range(2):
            for nt in range(2):
                r = pool.pop(0); W[(blk, ks, nt)] = r
                for hf in range(2):
                    its.ds(f"ds_read_b64_tr_b16 {rr(r+2*hf,2)}, v{vWA+2*st+nt} offset:{imm + (16*ks+4*hf)*128}", f"wr{blk}")
        return its.items
    pre = cfg.pre
    flagged = False
    def flag_store():
        g.wait_vm("ost")
        g(f"v_mov_b32 v11, 1\ns_mov_b64 exec, 1")
        g.vmem(f"buffer_store_dword v11, v10, s[{SWS}:{SWS+3}], s{sOB+1} offen sc1", "flag")
        g("s_mov_b64 exec, -1")
    nxt = 10
    for blk in range(pre):
        if blk == 10 and not flagged:
            flag_store(); flagged = True
        g.wait_vm(f"wo{blk}")
        for it in wo_read(blk, free): play(g, it)
        if blk >= 1:
            g.wait_lg(f"wr{blk-1}")
            if nxt < 32: wo_dma(nxt); nxt += 1
    if not flagged:
        flag_store()
    if pre >= 1:
        g.wait_lg(f"wr{pre-1}")
        if nxt < 32: wo_dma(nxt); nxt += 1
    stamp(g, cfg, 4)
    g.wait_vm("cnt")
    g(f"s_mov_b32 s{sJ}, 0")
    g.label("L_cnt")
    g(f"""
    v_readfirstlane_b32 s{sT0}, v{vFL}
    s_cmp_eq_u32 s{sT0}, 32
    s_cbranch_scc1 L_cntok
    s_add_u32 s{sJ}, s{sJ}, 1
    s_cmp_gt_u32 s{sJ}, {SPIN_MAX}
    s_cbranch_scc1 L_cntok
    s_sleep 2
    buffer_load_dword v{vFL}, v10, s[{SDBG}:{SDBG+3}], s{sT1} offen sc1
    s_waitcnt vmcnt(0)
    s_branch L_cnt
    """)
    g.label("L_cntok")
    g(f"""
    s_lshl_b32 s{sT0}, s{sXCD}, 2
    s_add_u32 s{sT0}, s{sT0}, s{sRB}
    s_lshl_b32 s{sT0}, s{sT0}, 5
    s_lshl_b32 s{sT2}, s{sWAVE}, 3
    s_add_u32 s{sT0}, s{sT0}, s{sT2}
    s_mul_i32 s{sT0}, s{sT0}, {FLAG_STRIDE}
    s_add_u32 s{sT0}, s{sT0}, {WS_FLAGS}
    v_and_b32 v11, 7, v{vLANE}
    v_mul_u32_u24 v11, {FLAG_STRIDE}, v11
    s_lshl_b32 s{sOB}, s{sXCD}, 21
    s_lshl_b32 s{sT2}, s{sWAVE}, 19
    s_add_u32 s{sOB}, s{sOB}, s{sT2}
    s_lshl_b32 s{sT2}, s{sRB}, 14
    s_add_u32 s{sOB}, s{sOB}, s{sT2}
    """)
    g.label("L_poll")
    g(f"""
    buffer_load_dword v{vFL}, v11, s[{SWS}:{SWS+3}], s{sT0} offen sc1
    s_waitcnt vmcnt(0)
    v_cmp_ne_u32 vcc, 1, v{vFL}
    s_cbranch_vccz L_pollok
    s_add_u32 s{sJ}, s{sJ}, 1
    s_cmp_gt_u32 s{sJ}, {SPIN_MAX}
    s_cbranch_scc1 L_pollok
    s_sleep 1
    s_branch L_poll
    """)
    g.label("L_pollok")
    g.vm = []
    stamp(g, cfg, 5)
    pool = free_o + free
    OF = {}
    oq = [(blk, ks, qt) for blk in range(32) for ks in range(2) for qt in range(2)]
    oi = [0]
    def o_load(rec, reserve):
        if oi[0] >= len(oq) or len(pool) <= reserve: return False
        blk, ks, qt = oq[oi[0]]; oi[0] += 1
        r = pool.pop(0); OF[(blk, ks, qt)] = r
        head, kk = blk // 4, (blk % 4) * 2 + ks
        off = head * 65536 + qt * 8192 + kk * 1024
        sreg = sT2 if qt == 0 else sT3
        if kk % 4 == 0:
            rec(f"s_add_u32 s{sreg}, s{sOB}, {off}")
        rec.vmem(f"buffer_load_dwordx4 {rr(r,4)}, v{vOL}, s[{SWS}:{SWS+3}], s{sreg} offen offset:{1024*(kk%4)} sc1", f"o{blk}_{ks}")
        return True
    def wo_dma2(rec, blk):
        st, imm, pos = wo_pos(blk % 10)
        if pos is None: rec(f"s_mov_b32 m0, s{sXL}")
        else: rec(f"s_add_u32 m0, s{sW4K}, {pos}")
        rec(f"s_add_u32 s{sT0}, s{sXS}, {blk * 32768}")
        dma_group(rec, SWO, [vOA + n for n in range(4)], sT0, f"wo{blk}", False)
    wnext = pre
    MAXVM = 56
    if pre == 0:
        for it in wo_read(0, pool): play(g, it)
        wnext = 1
    while len(g.vm) < MAXVM and o_load(g, 8 if wnext < 32 else 0): pass
    for blk in range(32):
        for ks in range(2):
            side = []
            if ks == 0 and wnext < 32 and wnext <= blk + 3 + (0 if pre < 4 else 32) and len(pool) >= 4:
                side.append(("wait", f"wo{wnext}"))
                side += wo_read(wnext, pool)
                wnext += 1
            if ks == 1 and nxt < 32 and nxt - 10 < wnext - 1:
                side.append(("waitl", f"wr{nxt-10}"))
                rec = Rec(); wo_dma2(rec, nxt); nxt += 1
                side += rec.items
            g.wait_vm(f"o{blk}_{ks}")
            if ks == 0: g.wait_lg(f"wr{blk}")
            mf = []
            for nt in range(2):
                for qt in range(2):
                    c = "0" if (blk == 0 and ks == 0) else vr(acc(nt, qt), 16)
                    mf.append(f"{MF} {vr(acc(nt,qt),16)}, {rr(W[(blk,ks,nt)],4)}, {rr(OF[(blk,ks,qt)],4)}, {c}")
            per = (len(side) + 2) // 3
            for i, m in enumerate(mf):
                g(m)
                if i < 3:
                    for it in side[i * per:(i + 1) * per]:
                        if it[0] == "wait": g.wait_vm(it[1])
                        elif it[0] == "waitl": g.wait_lg(it[1])
                        else: play(g, it)
            for nt in range(2): pool.append(W[(blk, ks, nt)])
            for qt in range(2): pool.append(OF[(blk, ks, qt)])
            cnt = 0
            while cnt < 3 and len(g.vm) < MAXVM and o_load(g, 4 if wnext < 32 else 0): cnt += 1
    assert oi[0] == len(oq) and wnext == 32 and nxt == 32
    g(f"v_add_u32 v2, s{sW4K}, v{vOL}\nv_add_u32 v2, {80*K}, v2")
    g(f"s_lshl_b32 s{sT0}, s{sWAVE}, 14\ns_add_u32 s{sT0}, s{sT0}, {80*K}\nv_add_u32 v3, s{sT0}, v{vOL}")
    g(f"""
    s_lshl_b32 s{sT0}, s{sXCD}, 18
    s_lshl_b32 s{sT1}, s{sRB}, 16
    s_add_u32 s{sT0}, s{sT0}, s{sT1}
    s_and_b32 s{sT1}, s{sWAVE}, 1
    s_lshl_b32 s{sT1}, s{sT1}, 15
    s_add_u32 s{sT0}, s{sT0}, s{sT1}
    s_lshl_b32 s{sT1}, s{sCB}, 7
    s_add_u32 s{sT0}, s{sT0}, s{sT1}
    s_lshr_b32 s{sT1}, s{sWAVE}, 1
    s_lshl_b32 s{sT1}, s{sT1}, 6
    s_add_u32 s{sT0}, s{sT0}, s{sT1}
    v_and_b32 v4, 31, v{vLANE}
    v_lshlrev_b32 v4, 10, v4
    v_lshrrev_b32 v5, 5, v{vLANE}
    v_lshl_add_u32 v4, v5, 4, v4
    """)
    for c in range(4):
        for k in range(4):
            r = acc(c >> 1, c & 1) + 4 * k
            g(f"ds_write_b128 v2, v[{r}:{r+3}] offset:{c*16384 + k*1024}")
    g("s_waitcnt lgkmcnt(0)\ns_barrier")
    for w in range(4):
        for k in range(4):
            g(f"ds_read_b128 v[{64+16*w+4*k}:{64+16*w+4*k+3}], v3 offset:{w*4096 + k*1024}")
    g("s_waitcnt lgkmcnt(8)")
    for i in range(16): g(f"v_add_f32 v{64+i}, v{64+i}, v{80+i}")
    g("s_waitcnt lgkmcnt(0)")
    for i in range(16): g(f"v_add_f32 v{96+i}, v{96+i}, v{112+i}")
    for i in range(16): g(f"v_add_f32 v{64+i}, v{64+i}, v{96+i}")
    for i in range(8): g(f"v_cvt_pk_bf16_f32 v{128+i}, v{64+2*i}, v{65+2*i}")
    g(f"buffer_store_dwordx4 v[128:131], v4, s[{SOUT}:{SOUT+3}], s{sT0} offen")
    g(f"buffer_store_dwordx4 v[132:135], v4, s[{SOUT}:{SOUT+3}], s{sT0} offen offset:32")
    if cfg.diag:
        g("s_waitcnt vmcnt(0)")
        g("s_memrealtime s[64:65]\ns_waitcnt lgkmcnt(0)")
        g(f"s_lshl_b32 s{sT0}, s2, 2\ns_add_u32 s{sT0}, s{sT0}, s{sWAVE}\ns_lshl_b32 s{sT0}, s{sT0}, 5\ns_add_u32 s{sT0}, s{sT0}, {WS_STAMP}")
        for i in range(6): g(f"v_mov_b32 v{64+i}, s{sSTAMP+2*i}")
        g("v_mov_b32 v70, s64\nv_mov_b32 v71, 0\nv_mov_b32 v10, 0\ns_mov_b64 exec, 1")
        g(f"buffer_store_dwordx4 v[64:67], v10, s[{SWS}:{SWS+3}], s{sT0} offen")
        g(f"buffer_store_dwordx4 v[68:71], v10, s[{SWS}:{SWS+3}], s{sT0} offen offset:16")
    g.label("L_end")
    g("s_endpgm")

def build(cfg):
    g = Gen()
    setup(g, cfg)
    g(f"s_cmp_eq_u32 s{sWAVE}, 2\ns_cbranch_scc1 L_roleW\ns_cmp_eq_u32 s{sWAVE}, 3\ns_cbranch_scc1 L_roleKV")
    qproj(g, cfg, "X")
    g.label("L_roleW"); qproj(g, cfg, "W")
    g.label("L_roleKV"); qproj(g, cfg, "KV")
    attention(g, cfg)
    tail(g, cfg)
    wo_switch(g, cfg)
    fallback(g, "a", 0); fallback(g, "b", 1); fallback(g, "c", 1)
    errs = check_hazards(g.lines, "lin")
    L = g.lines
    i0 = L.index("L_loop:"); i1 = L.index("L_loopexit:")
    errs += check_hazards(L[i1 - 40:i1] + L[i0:i0 + 60], "backedge")
    ib = L.index("    s_branch L_blk1"); i2 = L.index("L_blk1:")
    errs += check_hazards(L[ib - 40:ib] + L[i2:i2 + 60], "prologue->blk1")
    ie = L.index("    s_cbranch_scc1 L_loopexit")
    errs += check_hazards(L[ie - 40:ie] + L[i1:i1 + 60], "exit")
    iq = L.index("L_qdone:"); iw = L.index("L_roleW:")
    errs += check_hazards(L[iw - 40:iw] + L[iq:iq + 60], "qdone")
    for e in errs: print("HAZARD", e, file=sys.stderr)
    src = (HEADER + "; @launch grid=(256,1,1) block=(256,1,1) lds=163840\n"
        '.amdgcn_target "amdgcn-amd-amdhsa--gfx950"\n.text\n'
        f".globl {KNAME}\n.p2align 8\n.type {KNAME},@function\n{KNAME}:\n"
        + g.text() +
        '.section .rodata,"a"\n.p2align 6\n'
        f".amdhsa_kernel {KNAME}\n"
        "  .amdhsa_next_free_vgpr 512\n  .amdhsa_next_free_sgpr 102\n  .amdhsa_accum_offset 256\n"
        "  .amdhsa_group_segment_fixed_size 0\n  .amdhsa_kernarg_size 64\n  .amdhsa_user_sgpr_count 2\n"
        "  .amdhsa_user_sgpr_kernarg_segment_ptr 1\n  .amdhsa_system_sgpr_workgroup_id_x 1\n"
        ".end_amdhsa_kernel\n")
    return src, errs

if __name__ == "__main__":
    cfg = Cfg()
    out = sys.argv[1]
    for kv in sys.argv[2:]:
        k, v = kv.split("=")
        cur = getattr(cfg, k)
        setattr(cfg, k, type(cur)(eval(v)) if not isinstance(cur, bool) else bool(eval(v)))
    src, errs = build(cfg)
    open(out, "w").write(src)
    print(f"wrote {out}: {src.count(chr(10))} lines, {len(errs)} hazard findings")
```

```python
import re

class Gen:
    def __init__(self):
        self.lines = []
        self.vm = []
        self.lg = []
        self.uid = 0
    def __call__(self, s):
        for l in s.strip("\n").split("\n"):
            l = l.strip()
            if not l:
                continue
            self.lines.append(l if l.endswith(":") else "    " + l)
    def label(self, name):
        self.lines.append(name + ":")
    def comment(self, s):
        self.lines.append("    ; " + s)
    def newlabel(self, base):
        self.uid += 1
        return f"{base}_{self.uid}"
    def vmem(self, s, tag=None):
        self(s)
        self.vm.append(tag)
    def ds(self, s, tag=None):
        self(s)
        self.lg.append(tag)
    def _cnt(self, q, tags):
        idx = -1
        for i, t in enumerate(q):
            if t in tags:
                idx = i
        return idx
    def wait_vm(self, *tags):
        idx = self._cnt(self.vm, tags)
        if idx < 0:
            return
        n = len(self.vm) - 1 - idx
        n = min(n, 63)
        self(f"s_waitcnt vmcnt({n})")
        self.vm = self.vm[len(self.vm) - n:] if n else []
    def wait_lg(self, *tags):
        idx = self._cnt(self.lg, tags)
        if idx < 0:
            return
        n = len(self.lg) - 1 - idx
        n = min(n, 15)
        self(f"s_waitcnt lgkmcnt({n})")
        self.lg = self.lg[len(self.lg) - n:] if n else []
    def wait_all(self, vm=True, lg=True):
        parts = []
        if vm:
            parts.append("vmcnt(0)"); self.vm = []
        if lg:
            parts.append("lgkmcnt(0)"); self.lg = []
        self("s_waitcnt " + " ".join(parts))
    def text(self):
        return "\n".join(self.lines) + "\n"

def vr(base, n=1):
    return f"v{base}" if n == 1 else f"v[{base}:{base+n-1}]"
def ar(base, n=1):
    return f"a{base}" if n == 1 else f"a[{base}:{base+n-1}]"
def sr(base, n=1):
    return f"s{base}" if n == 1 else f"s[{base}:{base+n-1}]"
def rr(idx, n=1):
    return vr(idx, n) if idx < 256 else ar(idx - 256, n)

def interleave(mfmas, streams):
    n = len(mfmas)
    gaps = [[] for _ in range(n)]
    for st in streams:
        items = st["items"]
        if not items:
            continue
        f, l = st["first"], st["last"]
        tot = sum(c for c, _ in items)
        ng = l - f + 1
        acc = 0.0
        for c, e in items:
            g = f + min(ng - 1, int((acc + 0.5 * c) / tot * ng))
            gaps[g].append(e)
            acc += c
    return gaps

REG = re.compile(r"\b([vas])(?:\[(\d+):(\d+)\]|(\d+))")
def regs_of(tok):
    out = set()
    for m in REG.finditer(tok):
        k = m.group(1)
        if m.group(2) is not None:
            lo, hi = int(m.group(2)), int(m.group(3))
        else:
            lo = hi = int(m.group(4))
        for i in range(lo, hi + 1):
            out.add((k, i))
    return out

TRANS = ("v_exp_f32", "v_rcp_f32", "v_log_f32", "v_rsq_f32", "v_sqrt_f32")
def parse(line):
    l = line.split(";")[0].strip()
    if not l or l.endswith(":") or l.startswith("."):
        return None
    parts = l.split(None, 1)
    op = parts[0]
    ops = [o.strip() for o in parts[1].split(",")] if len(parts) > 1 else []
    d = dict(op=op, text=l, w=set(), r=set(), kind="salu")
    if op.startswith("v_mfma"):
        d["kind"] = "mfma"
        d["w"] = regs_of(ops[0]); d["a"] = regs_of(ops[1]); d["b"] = regs_of(ops[2]); d["c"] = regs_of(ops[3])
        d["r"] = d["a"] | d["b"] | d["c"]
    elif op.startswith("v_cmp"):
        d["kind"] = "valu"; d["w"] = regs_of(ops[0]) | ({("vcc", 0)} if ops[0] == "vcc" else set())
        for o in ops[1:]: d["r"] |= regs_of(o)
    elif op.startswith("v_permlane32_swap") or op.startswith("v_permlane16_swap"):
        d["kind"] = "valu"; d["w"] = regs_of(ops[0]) | regs_of(ops[1]); d["r"] = set(d["w"]); d["perm"] = True
    elif op.startswith("v_"):
        d["kind"] = "valu"; d["w"] = regs_of(ops[0])
        for o in ops[1:]: d["r"] |= regs_of(o)
        if "vcc" in ops[1:]: d["r"].add(("vcc", 0))
        if op.startswith("v_fmac") : d["r"] |= d["w"]
    elif op.startswith("ds_read"):
        d["kind"] = "ds"; d["w"] = regs_of(ops[0]); d["r"] = regs_of(ops[1].split()[0])
    elif op.startswith("ds_write"):
        d["kind"] = "ds"
        for o in ops: d["r"] |= regs_of(o.split()[0])
    elif op.startswith("ds_"):
        d["kind"] = "ds"; d["w"] = regs_of(ops[0])
        for o in ops[1:]: d["r"] |= regs_of(o.split()[0])
    elif op.startswith("buffer_load") or op.startswith("global_load"):
        d["kind"] = "vmem"
        if l.endswith(" lds"):
            for o in ops: d["r"] |= regs_of(o.split()[0])
            d["ldsdma"] = True
        else:
            d["w"] = regs_of(ops[0])
            for o in ops[1:]: d["r"] |= regs_of(o.split()[0])
    elif op.startswith("buffer_store") or op.startswith("buffer_atomic") or op.startswith("global_store"):
        d["kind"] = "vmem"
        for o in ops: d["r"] |= regs_of(o.split()[0])
        if op.endswith("x4") or op.endswith("x3"): d["wide_store"] = regs_of(ops[0])
    elif op.startswith("s_"):
        if op in ("s_nop",):
            d["nop"] = int(ops[0], 0) + 1
        elif op.startswith("s_cmp") or op.startswith("s_cbranch") or op in ("s_branch", "s_barrier", "s_waitcnt", "s_endpgm", "s_setprio", "s_sleep"):
            for o in ops: d["r"] |= regs_of(o)
        else:
            if ops:
                d["w"] = regs_of(ops[0]) | ({("m0", 0)} if ops[0] == "m0" else set()) | ({("exec", 0)} if ops[0] == "exec" or "saveexec" in op else set())
            for o in ops[1:]: d["r"] |= regs_of(o)
    return d

def check_hazards(lines, name=""):
    ins = [p for p in (parse(l) for l in lines) if p]
    errs = []
    W = 24
    for j, c in enumerate(ins):
        dist = 0
        for i in range(j - 1, max(-1, j - W - 1), -1):
            p = ins[i]
            need = 0; why = ""
            def ov(a, b): return bool(a & b)
            if p["kind"] == "mfma":
                big = "32x32" in p["op"]
                n1, n2, n3 = (12, 10, 7) if big else (8, 6, 3)
                if c["kind"] == "mfma":
                    if ov(p["w"], c["a"] | c["b"]): need, why = n1, "mfma D -> mfma A/B"
                    elif ov(p["w"], c["c"]) and p["w"] != c["c"]: need, why = n2, "mfma D -> partial C"
                elif c["kind"] in ("valu", "ds", "vmem"):
                    if ov(p["w"], c["r"] | c["w"]): need, why = n1, "mfma D -> valu/mem"
                    if c["kind"] == "valu" and ov(p["c"], c["w"]) and need < n3: need, why = n3, "mfma C WAR"
            elif p["kind"] == "valu":
                vw = {x for x in p["w"] if x[0] in "va"}
                sw = {x for x in p["w"] if x[0] in ("s", "vcc")}
                if c["kind"] == "mfma" and ov(vw, c["r"]): need, why = 2, "valu -> mfma"
                if c.get("perm") and ov(vw, c["r"]): need, why = 2, "valu -> permlane"
                if c["op"].startswith("v_readfirstlane") or c["op"].startswith("v_readlane"):
                    if ov(vw, c["r"]): need, why = max(need, 1), "valu -> readlane"
                if p["op"].startswith(TRANS) and c["kind"] == "valu" and not c["op"].startswith(TRANS) and ov(vw, c["r"]):
                    need, why = max(need, 1), "trans -> valu"
                if c["kind"] == "vmem" and ov(sw, c["r"]): need, why = 5, "valu sgpr -> vmem"
                if c["kind"] == "valu" and ov(sw, c["r"]): need, why = max(need, 2), "valu sgpr -> valu"
            elif p["kind"] == "salu":
                if ("m0", 0) in p["w"] and c.get("ldsdma"): need, why = 1, "m0 -> lds dma"
            elif p["kind"] == "vmem":
                if "wide_store" in p and c["kind"] in ("valu", "mfma", "ds", "vmem") and ov(p["wide_store"], c["w"]): need, why = 2, "store data WAR"
            if need > dist:
                errs.append(f"{name}: [{why}] need {need} have {dist}: '{p['text']}' -> '{c['text']}'")
            dist += p.get("nop", 1)
            if dist >= W: break
    return errs
```

```python
def classify(it):
    k, s, _ = it
    if k == "v": return "D", 8
    if k == "d": return "V", 4
    if k in ("wv", "wl"): return "N", 4
    lines = [l.strip() for l in s.split("\n") if l.strip() and not l.strip().endswith(":")]
    if len(lines) == 1:
        l = lines[0]
        if l.startswith("v_mfma"): return "M", 0
        if l.startswith(("v_exp", "v_rcp", "v_pk_")): return "V", 8
        if l.startswith("v_"): return "V", 4
        return "N", 4
    if lines[-1].startswith("v_mfma"): return "M", 4 * (len(lines) - 1)
    if all(l.startswith("s_") for l in lines): return "N", 4 * len(lines)
    return "V", 4 * len(lines)

def schedule(n, streams, dma_gap=4, state=None):
    st = []
    for s in streams:
        its = list(s["items"])
        if not its: continue
        costs = [max(classify(i)[1], 4) for i in its]
        st.append(dict(items=its, costs=costs, tot=sum(costs), done=0, pos=0, first=s["first"], last=min(s["last"], n - 1), ahead=s.get("ahead", 6)))
    gaps = []
    state = state if state is not None else {"since_dma": 99}
    for g in range(n):
        out = []
        def fill():
            pre, post = [], []
            free_n, free_a = 4, 8
            used = set()
            while True:
                best = None
                for si, s in enumerate(st):
                    if s["pos"] >= len(s["items"]) or g < s["first"]: continue
                    target = s["tot"] * (g - s["first"] + 1) / (s["last"] - s["first"] + 1)
                    urg = target - s["done"]
                    forced = g >= s["last"]
                    kind, c = classify(s["items"][s["pos"]])
                    if not forced:
                        if urg < -s["ahead"] + max(c, 4) * 0.5 - 4: continue
                        if kind == "V" and c > free_a and not (free_a == 8 and c > 8): continue
                        if kind == "N" and c > free_a + (free_n if si not in used or not post else 0) and not (free_a == 8 and free_n == 4): continue
                        if kind == "D" and (free_a < 8 or state["since_dma"] < dma_gap): continue
                    pr = urg / s["tot"] * (s["last"] - s["first"] + 1) + (1000 if forced else 0) + (3 if kind == "D" else 0)
                    if best is None or pr > best[0]: best = (pr, si, kind, c)
                if best is None: break
                _, si, kind, c = best
                s = st[si]; it = s["items"][s["pos"]]
                s["done"] += s["costs"][s["pos"]]; s["pos"] += 1
                if kind == "M":
                    return pre + post + [it], True
                in_post = any(x[0] == si for x in post)
                if kind == "N" and free_n == 4 and not in_post:
                    pre.append((si, it)); free_n = 0; free_a -= c - 4
                else:
                    post.append((si, it)); free_a -= c
                if kind == "D": state["since_dma"] = 0
                used.add(si)
            return pre + post, False
        while True:
            its, more = fill()
            out += [x[1] if isinstance(x[0], int) else x for x in its]
            state["since_dma"] += 1
            if not more: break
        gaps.append(out)
    for s in st:
        assert s["pos"] == len(s["items"])
    return gaps

def gap_report(mfmas, gaps):
    tot = 0
    for gap in gaps:
        t = 4; first = True
        for it in gap:
            kind, c = classify(it)
            if kind == "M":
                tot += max(16, t + c); t = 4; continue
            if kind in "VD": t = max(t, 8)
            t += 12 if kind == "D" else c
        tot += max(16, t)
    return tot
```

```python
import sys, math, struct
from core import *
from sched import schedule, gap_report

KNAME = "standalone__mha_block_cached__near_ridge_kernel"
HEADER = """; Kernarg layout for this problem (64 bytes, ptrs only, base s[0:1]):
"""
K = 1024
VRING = 64 * K
WOST = 128 * K
XSL = [16 * K, 80 * K]
WSL = [0, 8, 64, 72, 0, 8, 64, 72, 48, 56, 112, 120, 128, 136, 144, 152]
def kslot(j): return 16 * K * (j % 4)
def vslot(j): return VRING + 16 * K * (j % 4)

sWAVE = 3
SX, SWQ, SK, SV, SWO, SWS, SOUT, SDBG, SA, SB = 4, 8, 12, 16, 20, 24, 28, 32, 36, 40
sSOFFA, sSOFFB, sLDSA, sDB, sJ, sKD, sVD, sSTEP = 44, 45, 46, 47, 48, 49, 50, 51
sB, sH, sKG, sRB, sCB, sRW = 52, 53, 54, 55, 56, 57
sT0, sT1, sT2, sT3 = 58, 59, 60, 61
sTHR, sC4K, sC4V = 62, 63, 80
sC16K, sSPIN, sOWN, sPB, sFO, sFP, sFC1, sFC2, sOUTB = 66, 67, 68, 69, 70, 71, 72, 73, 78
sW4K = 81
sHOOK = 71
sXS, sXL = 82, 83
sSC = 84
sOB, sST = 88, 89
sSTAMP, sSTC = 90, 92
sROT, sT4, sWS_, sWL, sRDY, sCN, sW8K = 94, 95, 96, 97, 98, 99, 100

vLANE = 1
vKA = 16
vVA = 20
vOA = 32
vOB = 36
vRO = 40
vL = 44
vCK, vST = 48, 49
vWO = 50
vT = 52
NT = 8
vONE = 60
vSEN = 28
vWR = 28
vOL, vFL, vFA, vZ = 40, 41, 42, 43
def P(par, qt): return 64 + 16 * par + 4 * qt
def NEGM(qt): return 96 + 4 * qt
def LS(qt): return 112 + 4 * qt
def S(par, qt): return 128 + 32 * par + 8 * qt
def Q(qt, s): return 192 + 16 * qt + 4 * s
def QACC(qt, tile): return 128 + 32 * qt + 4 * tile
def O(qt, t): return 32 * qt + 4 * t
def KF(kt, s): return 128 + 16 * kt + 4 * s
def VF(t): return 160 + 4 * t
def WF(st, tile): return 128 + 32 * st + 4 * tile
XH = [256, 288, 320, 352, 448, 480, 64, 96]
def XF(c, ks, qt): return XH[c] + 16 * ks + 4 * qt

WS_PART = 16 * K * K
WS_FLAGS = 28 * K * K
WS_STAMP = 32 * K * K
WS_QDUMP = 64 * K * K
FS = 128
SPIN_MAX = 400000
MF = "v_mfma_f32_16x16x32_bf16"
def f32bits(x): return struct.unpack("<I", struct.pack("<f", x))[0]

class Cfg:
    diag = 0
    qdump = False
    thr = 16384.0
    nt_kv = True
    rot = True
    tlb = True
    wotouch = True
    qs = "a"
    pv_b = True
    qk_b = False
    sm_split = 24
    lead = 2
    dloop = False

STAMPS = []
def stamp(g, cfg, name, first=False, rep=1, record=True, wait=False):
    if not cfg.diag:
        return
    if cfg.dloop and name not in ("start", "x", "blk", "end"):
        return
    if not cfg.dloop and name == "blk":
        return
    if record:
        STAMPS.extend([name] if rep == 1 else [f"{name}{i}" for i in range(rep)])
    if first:
        g(f"s_mov_b64 s[{sSTC}:{sSTC+1}], 1")
    else:
        if wait: g("s_waitcnt lgkmcnt(0)")
        g(f"s_mov_b64 exec, s[{sSTC}:{sSTC+1}]\nv_mov_b32 v{vST}, s{sSTAMP}\ns_mov_b64 exec, -1\ns_lshl_b64 s[{sSTC}:{sSTC+1}], s[{sSTC}:{sSTC+1}], 1")
    g(f"{'s_memrealtime' if cfg.diag == 1 else 's_memtime'} s[{sSTAMP}:{sSTAMP+1}]")

class Rec(Gen):
    def __init__(self):
        super().__init__(); self.items = []
    def __call__(self, s):
        for l in s.strip("\n").split("\n"):
            l = l.strip()
            if l: self.items.append(("i", l, None))
    def vmem(self, s, tag=None): self.items.append(("v", s, tag))
    def ds(self, s, tag=None): self.items.append(("d", s, tag))
    def atom(self, s): self.items.append(("i", s.strip(), None))
    def wv(self, *tags): self.items.append(("wv", tags, None))
    def wl(self, *tags): self.items.append(("wl", tags, None))

def play(g, it):
    k, s, tag = it
    if k == "i": g(s)
    elif k == "v": g.vmem(s, tag)
    elif k == "wv": g.wait_vm(*s)
    elif k == "wl": g.wait_lg(*s)
    else: g.ds(s, tag)

REPORT = []
SSTATE = {"since_dma": 99}
def emit_block(g, mfmas, streams, name=None, dma_gap=4):
    ss = []
    for t in streams:
        d = dict(items=t[0], first=t[1], last=t[2])
        if len(t) > 3: d["ahead"] = t[3]
        ss.append(d)
    gaps = schedule(len(mfmas), ss, dma_gap=dma_gap, state=SSTATE)
    if name: REPORT.append((name, gap_report(mfmas, gaps)))
    for m, gap in zip(mfmas, gaps):
        g(m)
        for it in gap:
            play(g, it)

def srd(g, d, lo, hi, size, off=None):
    if off is None:
        g(f"s_mov_b32 s{d}, s{lo}\ns_mov_b32 s{d+1}, s{hi}")
    else:
        g(f"s_add_u32 s{d}, s{lo}, {off}\ns_addc_u32 s{d+1}, s{hi}, 0")
    g(f"s_mov_b32 s{d+2}, {size}\ns_mov_b32 s{d+3}, 0x20000")

def dma_group(g, srdreg, vregs, soff, tag, fl=""):
    for n in range(4):
        g.vmem(f"buffer_load_dwordx4 v{vregs[n]}, s[{srdreg}:{srdreg+3}], s{soff} offen offset:{1024*n}{fl} lds", tag)

def setup(g, cfg):
    g(f"""
    s_cmp_ge_u32 s2, 256
    s_cbranch_scc1 L_end
    s_load_dwordx16 s[64:79], s[0:1], 0
    """)
    stamp(g, cfg, "start", first=True)
    g(f"""
    v_lshrrev_b32 v2, 6, v0
    v_and_b32 v{vLANE}, 63, v0
    v_readfirstlane_b32 s{sWAVE}, v2
    s_bfe_u32 s{sT0}, s2, 0x20003
    s_lshr_b32 s{sT1}, s2, 5
    s_and_b32 s{sB}, s2, 1
    s_lshl_b32 s{sB}, s{sB}, 2
    s_add_u32 s{sB}, s{sB}, s{sT0}
    s_bfe_u32 s{sKG}, s2, 0x20001
    s_lshl_b32 s{sH}, s{sKG}, 3
    s_add_u32 s{sH}, s{sH}, s{sT1}
    s_and_b32 s{sRB}, s{sT1}, 1
    s_lshr_b32 s{sCB}, s{sT1}, 1
    s_lshl_b32 s{sT0}, s{sT0}, 1
    s_add_u32 s{sRW}, s{sT0}, s{sRB}
    s_add_u32 s{sROT}, s{sT0}, s{sT1}
    s_and_b32 s{sROT}, s{sROT}, 7
    s_lshl_b32 s{sW4K}, s{sWAVE}, 12
    s_lshl_b32 s{sW8K}, s{sWAVE}, 13
    """)
    if not cfg.rot:
        g(f"s_mov_b32 s{sROT}, 0\ns_mov_b32 s{sRW}, 0")
    g(f"""
    v_and_b32 v2, 15, v{vLANE}
    v_lshrrev_b32 v3, 4, v{vLANE}
    v_lshrrev_b32 v5, 3, v{vLANE}
    v_and_b32 v6, 7, v{vLANE}
    v_bfe_u32 v7, v{vLANE}, 2, 2
    v_xor_b32 v8, v6, v3
    v_lshlrev_b32 v8, 4, v8
    v_lshl_add_u32 v{vRO}, v5, 10, v8
    v_xor_b32 v8, 64, v{vRO}
    v_add_u32 v{vRO+1}, 7168, v8
    v_add_u32 v{vRO+2}, {2*7168}, v{vRO}
    v_add_u32 v{vRO+3}, {3*7168}, v8
    v_lshlrev_b32 v8, 2, v3
    v_xor_b32 v8, v2, v8
    v_lshlrev_b32 v9, 4, v8
    v_lshl_add_u32 v{vWO}, v3, 13, v9
    v_add_u32 v{vWO+1}, 31744, v{vWO}
    s_lshl_b32 s{sXS}, s{sB}, 18
    s_lshl_b32 s{sT0}, s{sWAVE}, 16
    s_add_u32 s{sXS}, s{sXS}, s{sT0}
    s_lshl_b32 s{sWS_}, s{sH}, 8
    s_add_u32 s{sWS_}, s{sWS_}, s{sT0}
    s_lshl_b32 s{sWL}, s{sWAVE}, 11
    s_lshl_b32 s{sXL}, s{sROT}, 19
    s_waitcnt lgkmcnt(0)
    """)
    srd(g, SWQ, 70, 71, 4 * K * K)
    srd(g, SX, 64, 65, 2 * K * K)

def pslot(g, p, sT1=sT1):
    g(f"""s_add_u32 s{sT1}, s{sOWN}, {p + 1}
    s_and_b32 s{sT1}, s{sT1}, 3
    s_mul_i32 s{sT1}, s{sT1}, {3 * 16384}
    s_add_u32 s{sT1}, s{sT1}, s{sPB}
    s_add_u32 s{sT1}, s{sT1}, {p * 16384}""")

def setup_late(g, cfg):
    g(f"s_lshl_b32 s{sT0}, s{sB}, 5\ns_add_u32 s{sT0}, s{sT0}, s{sH}\ns_lshl_b32 s{sT1}, s{sT0}, 18")
    srd(g, SK, 66, 67, 256 * K, f"s{sT1}")
    srd(g, SV, 68, 69, 256 * K, f"s{sT1}")
    srd(g, SWO, 72, 73, 4 * K * K)
    srd(g, SWS, 78, 79, 128 * K * K)
    srd(g, SOUT, 74, 75, 2 * K * K)
    srd(g, SDBG, 76, 77, 256)
    for i in range(4):
        g(f"s_mov_b32 s{SA+i}, s{SK+i}\ns_mov_b32 s{SB+i}, s{SV+i}")
    g(f"""
    s_lshl_b32 s{sST}, s{sT0}, 16
    s_lshl_b32 s{sT1}, s{sWAVE}, 14
    s_add_u32 s{sST}, s{sST}, s{sT1}
    s_lshl_b32 s{sT0}, s{sT0}, 2
    s_add_u32 s{sT0}, s{sT0}, s{sWAVE}
    s_mul_i32 s{sT0}, s{sT0}, {FS}
    s_add_u32 s{sFO}, s{sT0}, {WS_FLAGS}
    s_add_u32 s{sOWN}, s{sKG}, s{sCB}
    s_and_b32 s{sOWN}, s{sOWN}, 3
    s_lshl_b32 s{sT0}, s{sB}, 1
    s_add_u32 s{sT0}, s{sT0}, s{sRB}
    s_lshl_b32 s{sT0}, s{sT0}, 2
    s_add_u32 s{sT0}, s{sT0}, s{sCB}
    s_mul_i32 s{sPB}, s{sT0}, {12 * 16384}
    s_add_u32 s{sPB}, s{sPB}, s{sW4K}
    s_add_u32 s{sPB}, s{sPB}, {WS_PART}
    v_lshlrev_b32 v4, 4, v{vLANE}
    v_mov_b32 v11, 0
    """)
    for i in range(4): g(f"v_mov_b32 v{vSEN+i}, -1")
    g("s_mov_b64 exec, 1")
    g.vmem(f"buffer_store_dword v11, v11, s[{SWS}:{SWS+3}], s{sFO} offen sc1", "fz")
    if cfg.tlb:
        g(f"s_lshl_b32 s{sT2}, s{sB}, 18\ns_lshl_b32 s{sT3}, s{sKG}, 20")
        g.vmem(f"buffer_load_dword v{vT+4}, v11, s[{SK}:{SK+3}], 0 offen nt", "tlb")
        g.vmem(f"buffer_load_dword v{vT+5}, v11, s[{SV}:{SV+3}], 0 offen nt", "tlb")
        g.vmem(f"buffer_load_dword v{vT+6}, v11, s[{SOUT}:{SOUT+3}], s{sT2} offen nt", "tlb")
        g.vmem(f"buffer_load_dword v{vT+7}, v11, s[{SWO}:{SWO+3}], s{sT3} offen nt", "tlb")
    g("s_mov_b64 exec, -1")
    g(f"""
    v_xor_b32 v8, v2, v3
    v_lshlrev_b32 v8, 4, v8
    v_lshl_add_u32 v{vOA}, v3, 8, v8
    v_xor_b32 v{vOA+1}, 64, v{vOA}
    v_xor_b32 v{vOA+2}, 0x80, v{vOA}
    v_xor_b32 v{vOA+3}, 0xc0, v{vOA}
    v_lshlrev_b32 v8, 1, v3
    v_xor_b32 v8, v2, v8
    v_lshlrev_b32 v8, 4, v8
    v_lshl_add_u32 v{vOB}, v3, 8, v8
    v_xor_b32 v{vOB+1}, 0x80, v{vOB}
    v_mov_b32 v{vOB+2}, v{vOB}
    v_mov_b32 v{vOB+3}, v{vOB+1}
    """)
    g(f"""
    v_and_b32 v12, 3, v{vLANE}
    v_lshl_add_u32 v13, v3, 3, v7
    v_lshlrev_b32 v13, 8, v13
    v_lshl_add_u32 v13, v7, 6, v13
    v_lshl_add_u32 v{vVA}, v12, 4, v13
    v_add_u32 v{vVA+4}, {64*K}, v{vVA}
    """)
    for s in range(1, 4):
        g(f"v_xor_b32 v{vVA+s}, {s<<6}, v{vVA}\nv_xor_b32 v{vVA+4+s}, {s<<6}, v{vVA+4}")
    g(f"""
    v_lshrrev_b32 v13, 1, v2
    v_xor_b32 v13, v13, v3
    v_lshlrev_b32 v13, 4, v13
    v_lshl_add_u32 v13, v2, 7, v13
    v_add_u32 v13, s{sW8K}, v13
    v_add_u32 v{vKA}, {XSL[0]}, v13
    v_add_u32 v{vKA+2}, {XSL[1]}, v13
    v_xor_b32 v{vKA+1}, 64, v{vKA}
    v_xor_b32 v{vKA+3}, 64, v{vKA+2}
    s_mov_b32 s{sTHR}, {f32bits(cfg.thr):#x}
    s_mov_b32 s{sSC}, {f32bits(math.log2(math.e) / math.sqrt(128.0)):#x}
    s_mov_b32 s{sSC+1}, s{sSC}
    """)
    for i in range(4):
        g(f"v_mov_b32 v{vL+i}, 0\nv_mov_b32 v{vONE+i}, 0x3f803f80")

def kaddr_items():
    r = Rec()
    r(f"""
    v_xor_b32 v10, v2, v3
    v_lshlrev_b32 v10, 4, v10
    v_lshl_add_u32 v{vKA}, v2, 8, v10
    """)
    for s in range(1, 4): r(f"v_xor_b32 v{vKA+s}, {s<<6}, v{vKA}")
    return r.items

def vaddr_items():
    r = Rec()
    r(f"""
    v_lshl_add_u32 v10, v3, 2, v7
    v_and_b32 v11, 7, v10
    v_lshlrev_b32 v10, 8, v10
    v_lshl_add_u32 v10, v11, 5, v10
    v_lshl_add_u32 v10, v12, 3, v10
    v_add_u32 v{vVA}, {vslot(0)}, v10
    """)
    for t in range(1, 8): r(f"v_xor_b32 v{vVA+t}, {t<<5}, v{vVA}")
    return r.items

def kv_group(g, cfg, kind, j):
    lds, srdreg, vb = (kslot(j), SK, vOA) if kind == "K" else (vslot(j), SV, vOB)
    g(f"s_add_u32 m0, s{sW4K}, {lds}\ns_add_u32 s{sT0}, s{sW4K}, {16384 * j}")
    dma_group(g, srdreg, [vb + n for n in range(4)], sT0, f"{kind}{j}", " nt" if cfg.nt_kv else "")

def x_dma(g, cfg, c, grp):
    if grp == 0:
        g(f"s_add_u32 s{sT4}, s{sROT}, {c}\ns_and_b32 s{sT4}, s{sT4}, 7\ns_lshl_b32 s{sT4}, s{sT4}, 7")
    g(f"s_add_u32 m0, s{sW8K}, {XSL[c % 2] + grp * 4096}")
    g(f"s_add_u32 s{sT4}, s{sT4}, " + (f"s{sXS}" if grp == 0 else "32768"))
    dma_group(g, SX, [vRO + n for n in range(4)], sT4, f"x{c}")

def w_dma(g, cfg, k):
    g(f"s_add_u32 s{sT0}, s{sXL}, {k << 18}\ns_and_b32 s{sT0}, s{sT0}, 0x3fffff")
    g(f"s_add_u32 m0, s{sWL}, {WSL[k] * K}")
    g(f"s_add_u32 s{sT0}, s{sT0}, s{sWS_}")
    for n in range(2):
        g.vmem(f"buffer_load_dwordx4 v{vWO+n}, s[{SWQ}:{SWQ+3}], s{sT0} offen offset:{1024*n} lds", f"w{k}")

def kfrag_reads(off):
    r = Rec()
    for s in range(4):
        for kt in range(2):
            r.ds(f"ds_read_b128 {ar(KF(kt,s),4)}, v{vKA+s} offset:{off + kt*4096}", "kf")
    return r.items

def vfrag_reads(sub):
    r = Rec()
    for t in range(8):
        for hf in range(2):
            r.ds(f"ds_read_b64_tr_b16 {ar(VF(t)+2*hf,2)}, v{vVA+t} offset:{sub*8192 + hf*4096}", "vf")
    return r.items

QS = {
 "a": dict(xread=[-1, 0, 2, 3, 5, 6, 8, 9],
           d={0: "x2a x2b", 1: "w4 w5 x3a", 2: "x3b w6 w8", 3: "x4a x4b", 4: "w7 w9 x5a", 5: "x5b w10 w11", 6: "x6a x6b",
              7: "w12 w13 x7a", 8: "x7b w14 w15", 9: "K0 V0", 10: "K1", 11: "z0", 12: "V1", 13: "z1", 14: "K2", 15: "z2", 16: "V2"}),
 "b": dict(xread=[-1, 0, 2, 4, 5, 7, 9, 11],
           d={0: "x2a x2b", 1: "w4 x3a", 2: "w5 w6 x3b", 3: "w7 x4a", 4: "x4b w8", 5: "x5a w9 w10", 6: "x5b w11", 7: "x6a x6b",
              8: "w12 x7a", 9: "x7b w13", 10: "w14 w15 K0", 11: "V0 z0", 12: "K1 z1", 13: "V1", 14: "z2", 15: "K2", 16: "V2"}),
}

def qproj(g, cfg):
    qs = QS[cfg.qs]
    def load(g, name):
        if name[0] == "x": x_dma(g, cfg, int(name[1]), "ab".index(name[2]))
        elif name[0] == "w": w_dma(g, cfg, int(name[1:]))
        elif name[0] == "z":
            pslot(g, int(name[1]), sT0)
            for k in range(4):
                g.vmem(f"buffer_store_dwordx4 v[{vSEN}:{vSEN+3}], v4, s[{SWS}:{SWS+3}], s{sT0} offen offset:{1024*k} sc1", "fz")
        else: kv_group(g, cfg, name[0], int(name[1]))
    for name in "w0 x0a x0b w1 x1a x1b w2 w3".split(): load(g, name)
    setup_late(g, cfg)
    xlast = qs["xread"][7]
    free_after = {"K0": 5, "V0": 7, "K1": qs["xread"][6] + 1, "K2": qs["xread"][6] + 1, "V1": xlast + 1, "V2": xlast + 1}
    for k in range(4, 8): free_after[f"w{k}"] = k - 4
    for c in range(2, 8): free_after[f"x{c}a"] = free_after[f"x{c}b"] = qs["xread"][c - 2] + 1
    for h in range(-1, 16):
        g.comment(f"---- H({h})")
        if h + 1 <= 15:
            assert f"w{h+1}" not in " ".join(v for kk, v in qs["d"].items() if kk >= h).split()
            g.wait_vm(f"w{h+1}")
        else: g.wait_vm("K0", "K1", "V0")
        if h >= 0: g.wait_all(vm=False, lg=True)
        g("s_barrier")
        stamp(g, cfg, f"H{h}")
        xr = []
        if h in qs["xread"]:
            c = qs["xread"].index(h)
            assert h < 2 * c or c == 0
            assert f"x{c}b" not in " ".join(v for kk, v in qs["d"].items() if kk >= h).split()
            rd = Rec(); rd.wv(f"x{c}")
            for ks in range(2):
                for qt in range(4):
                    rd.ds(f"ds_read_b128 {rr(XF(c,ks,qt),4)}, v{vKA+2*(c%2)+ks} offset:{qt*2048}", f"xr{c}")
            xr = rd.items
        rd = Rec()
        if h + 1 <= 15:
            k = h + 1
            pos = WSL[k] * K
            st, base = (1, 64 * K) if 64 * K <= pos < 128 * K else (0, 0 if pos < 64 * K else 128 * K)
            assert (base == 128 * K) == (st == 0 and k > 9)
            for s in range(4):
                for tb in range(2):
                    for hf in range(2):
                        rd.ds(f"ds_read_b64_tr_b16 {ar(WF(k%2, 2*s+tb)+2*hf,2)}, v{vVA+4*st+s} offset:{pos - base + hf*1024 + tb*8}")
        else:
            rd.items = kfrag_reads(0)
        wr = rd.items
        dm = Rec()
        for name in qs["d"].get(h, "").split():
            assert h >= free_after.get(name, 0), name
            load(dm, name)
        misc = Rec()
        if h == 9:
            for s in range(4): misc(f"v_add_u32 v{vVA+s}, {128*K}, v{vVA+s}")
        if h == 14:
            assert xlast < 14
            misc.items += kaddr_items()
        if h == 15: misc.items += vaddr_items()
        if h == 11 and cfg.wotouch:
            misc(f"v_lshlrev_b32 v10, 6, v{vLANE}")
            misc.atom(f"s_lshl_b32 s{sT1}, s2, 14\ns_add_u32 s{sT1}, s{sT1}, s{sW4K}")
            misc.vmem(f"buffer_load_dword v{vT+2}, v10, s[{SWO}:{SWO+3}], s{sT1} offen", "touch")
        if h >= 8:
            for i in range(16 * (h - 8), 16 * (h - 7)): misc(f"v_accvgpr_write_b32 a{i}, 0")
        if h == -1:
            for it in wr + xr: play(g, it)
            continue
        c = h // 2
        order = [(qt, tile) for tile in range(8) for qt in range(4)]
        if h == 15: order = [(qt, tile) for qt in range(3, -1, -1) for tile in range(7, -1, -1)]
        mf = []
        for qt, tile in order:
            cc = "0" if h == 0 else vr(QACC(qt, tile), 4)
            mf.append(f"{MF} {vr(QACC(qt,tile),4)}, {ar(WF(h%2,tile),4)}, {rr(XF(c, h%2, qt),4)}, {cc}")
        emit_block(g, mf, [(dm.items, 0, 31, 40), (wr, 0, 20), (xr, 20, 27), (misc.items, 0, 31)], name=f"H{h}")
    return [n for n in qs["d"].get(16, "").split()]

def softmax_items(par):
    r = Rec()
    def T(i): return vT + (i % NT)
    pend = []
    for pi in range(16):
        qt, k = pi // 4, 2 * (pi % 4)
        r(f"v_exp_f32 v{T(2*pi)}, v{S(par,qt)+k}")
        if pi > 0:
            q0 = (pi - 1) // 4
            r(f"v_cvt_pk_bf16_f32 v{P(par,q0)+(pi-1)%4}, v{T(2*pi-2)}, v{T(2*pi-1)}")
        r(f"v_exp_f32 v{T(2*pi+1)}, v{S(par,qt)+k+1}")
        if pi % 4 == 1 and pi > 1:
            q0 = pi // 4 - 1
            r(f"{MF} {vr(LS(q0),4)}, {vr(vONE,4)}, {vr(P(par,q0),4)}, 0")
    r.atom(f"s_nop 0\nv_cvt_pk_bf16_f32 v{P(par,3)+3}, v{T(30)}, v{T(31)}")
    r.atom(f"s_nop 1\n{MF} {vr(LS(3),4)}, {vr(vONE,4)}, {vr(P(par,3),4)}, 0")
    return r.items

def check_items(site):
    r = Rec()
    r(f"v_add_f32 v{vCK}, v{LS(0)}, v{LS(1)}")
    r(f"v_add_f32 v{vCK}, v{vCK}, v{LS(2)}")
    a = r.items; r = Rec()
    r(f"v_add_f32 v{vCK}, v{vCK}, v{LS(3)}")
    r(f"v_cmp_nge_f32 vcc, s{sTHR}, v{vCK}")
    r.atom(f"s_cbranch_vccnz L_fb_{site}\nL_fbret_{site}:")
    b = r.items; r = Rec()
    for qt in range(4): r(f"v_add_f32 v{vL+qt}, v{vL+qt}, v{LS(qt)}")
    return a, b, r.items

def qk_mfmas(cfg, par, first_c=None):
    mf = []
    for s in range(4):
        order = [(kt, qt) for qt in range(4) for kt in range(2)] if (cfg.qk_b or s == 3) else [(kt, qt) for kt in range(2) for qt in range(4)]
        for kt, qt in order:
            d = vr(S(par, qt) + 4 * kt, 4)
            c = d if s else (first_c if first_c is not None else vr(NEGM(qt), 4))
            mf.append(f"{MF} {d}, {ar(KF(kt,s),4)}, {vr(Q(qt,s),4)}, {c}")
    return mf

def pv_mfmas(cfg, par, border=None):
    border = cfg.pv_b if border is None else border
    order = [(t, qt) for qt in range(4) for t in range(8)] if border else [(t, qt) for t in range(8) for qt in range(4)]
    return [f"{MF} {ar(O(qt,t),4)}, {ar(VF(t),4)}, {vr(P(par,qt),4)}, {ar(O(qt,t),4)}" for t, qt in order]

def rowmax4(g, par, dst, tmp):
    for qt in range(4):
        s = S(par, qt)
        g(f"v_max3_f32 v{dst+qt}, v{s}, v{s+1}, v{s+2}")
        g(f"v_max3_f32 v{tmp+qt}, v{s+3}, v{s+4}, v{s+5}")
    for qt in range(4):
        s = S(par, qt)
        g(f"v_max3_f32 v{dst+qt}, v{dst+qt}, v{s+6}, v{s+7}")
    for qt in range(4): g(f"v_max_f32 v{dst+qt}, v{dst+qt}, v{tmp+qt}")
    for op in ("v_permlane16_swap_b32", "v_permlane32_swap_b32"):
        for qt in range(4): g(f"v_mov_b32 v{tmp+qt}, v{dst+qt}")
        g("s_nop 1")
        for qt in range(4): g(f"{op} v{dst+qt}, v{tmp+qt}")
        for qt in range(4): g(f"v_max_f32 v{dst+qt}, v{dst+qt}, v{tmp+qt}")

def loop_dma_items(cfg):
    fl = " nt" if cfg.nt_kv else ""
    a = Rec()
    a.atom(f"s_mov_b32 m0, s{sLDSA}\ns_add_u32 s{sSOFFB}, s{sSOFFA}, s{sDB}")
    dma_group(a, SA, [vOA + n for n in range(4)], sSOFFA, "d", fl)
    b = Rec()
    b.atom(f"s_add_u32 m0, s{sLDSA}, {VRING}\ns_add_u32 s{sSOFFA}, s{sSOFFA}, s{sSTEP}")
    dma_group(b, SB, [vOB + n for n in range(4)], sSOFFB, "d", fl)
    b.atom(f"s_and_b32 s{sSOFFA}, s{sSOFFA}, 0xfffff\ns_add_u32 s{sLDSA}, s{sLDSA}, 16384\ns_and_b32 s{sLDSA}, s{sLDSA}, 0xffff")
    return a.items, b.items

def ring_step_items(sC, sD, base, n):
    r = Rec()
    r.atom(f"s_add_u32 s{sC}, s{sC}, 1\ns_and_b32 s{sC}, s{sC}, 3\ns_cselect_b32 s{sD}, s{sC16K}, {(-49152) & 0xffffffff:#x}")
    for i in range(n):
        r(f"v_add_u32 v{base+i}, s{sD}, v{base+i}")
    return r.items

def attention(g, cfg, late):
    SP = cfg.sm_split
    stamp(g, cfg, "qdone", wait=True)
    lr = Rec()
    for name in late: kv_group(lr, cfg, name[0], int(name[1]))
    lr = lr.items
    for p in range(63, -1, -1):
        src = 128 + 2 * p
        if p % 6 == 0 and lr:
            while lr[0][0] != "v": play(g, lr.pop(0))
            play(g, lr.pop(0))
        g(f"v_pk_mul_f32 v[{src}:{src+1}], v[{src}:{src+1}], s[{sSC}:{sSC+1}]")
        if p < 63:
            g(f"v_cvt_pk_bf16_f32 v{192+p+1}, v{src+2}, v{src+3}")
    g(f"v_cvt_pk_bf16_f32 v192, v128, v129")
    if cfg.qdump:
        g(f"s_add_u32 s{sT0}, s{sST}, {WS_QDUMP}\nv_lshlrev_b32 v10, 4, v{vLANE}")
        for f in range(16):
            if f % 4 == 0 and f: g(f"s_add_u32 s{sT0}, s{sT0}, 4096")
            g(f"buffer_store_dwordx4 v[{192+4*f}:{195+4*f}], v10, s[{SWS}:{SWS+3}], s{sT0} offen offset:{1024*(f%4)}")
        g("s_waitcnt vmcnt(0)")
    g(f"""
    s_mov_b32 s{sJ}, 0
    s_mov_b32 s{sHOOK}, 3
    s_mov_b32 s{sC4K}, 0
    s_mov_b32 s{sC4V}, 0
    s_mov_b32 s{sSTEP}, 16384
    s_mov_b32 s{sC16K}, 16384
    s_mov_b32 s{sDB}, 0
    s_add_u32 s{sSOFFA}, s{sW4K}, {3*16384}
    s_add_u32 s{sLDSA}, s{sW4K}, {kslot(3)}
    s_waitcnt lgkmcnt(0)
    """)
    stamp(g, cfg, "qconv")
    mf = qk_mfmas(cfg, 0, first_c="0")
    kr = kfrag_reads(8192)
    da, db = loop_dma_items(cfg)
    emit_block(g, mf, [(da, 0, 24)] + [(kr[2*i:2*i+2], 8*i+7, min(31, 8*i+8)) for i in range(4)])
    g("s_nop 5")
    rowmax4(g, 0, vT, vT + 4)
    for qt in range(4):
        for k in range(8): g(f"v_sub_f32 v{S(0,qt)+k}, v{S(0,qt)+k}, v{vT+qt}")
        for k in range(4): g(f"v_sub_f32 v{NEGM(qt)+k}, 0, v{vT+qt}")
    sm0 = softmax_items(0); sm1 = softmax_items(1)
    for it in sm0[:SP]: play(g, it)
    g("s_branch L_blk1")

    ca = check_items("a"); cb = check_items("b")
    g(".p2align 6")
    g.label("L_loop")
    g("s_waitcnt vmcnt(12) lgkmcnt(0)")
    g("s_barrier")
    stamp(g, cfg, "it", rep=15)
    stamp(g, cfg, "blk", rep=62)
    g(f"s_cmp_eq_u32 s{sJ}, s{sHOOK}\ns_cbranch_scc1 L_hook")
    g.label("L_switchret")
    F = cfg.lead
    emit_block(g, pv_mfmas(cfg, 1), [(cb[2], 0, 2), (kfrag_reads(8192), 0, 24), (ring_step_items(sC4V, sVD, vVA, 8), 3, 31), (da, 3, 31), (sm0[:SP], F, 31)], name="B0")
    g.label("L_blk1")
    g("s_waitcnt lgkmcnt(0)")
    stamp(g, cfg, "blk", record=False)
    emit_block(g, qk_mfmas(cfg, 1), [(vfrag_reads(0), 0, 26), (sm0[SP:], 0, 25), (ca[0], 26, 27), (ring_step_items(sC4K, sKD, vKA, 4), 26, 29), (ca[1], 30, 31)], name="B1")
    g("s_waitcnt lgkmcnt(0)")
    stamp(g, cfg, "blk", record=False)
    emit_block(g, pv_mfmas(cfg, 0), [(ca[2], 0, 2), (kfrag_reads(0), 0, 24), (db, 3, 31), (sm1[:SP], F, 31)], name="B2")
    g(f"s_cmp_eq_u32 s{sJ}, 15\ns_cbranch_scc1 L_loopexit")
    g("s_waitcnt lgkmcnt(0)")
    stamp(g, cfg, "blk", record=False)
    tl = Rec(); tl(f"s_add_u32 s{sJ}, s{sJ}, 1\ns_nop 0\ns_nop 0")
    emit_block(g, qk_mfmas(cfg, 0), [(vfrag_reads(1), 0, 26), (sm1[SP:], 0, 25), (cb[0], 26, 27), (tl.items, 27, 29), (cb[1], 30, 31)], name="B3")
    g("s_branch L_loop")

def wo_tile_pos(tau):
    if tau < 2: return WOST + 16 * K * tau
    if tau < 10:
        m = (tau - 2) // 2
        return kslot(16 + m) if tau % 2 == 0 else vslot(16 + m)
    return wo_tile_pos(tau - 8)

def wo_dma(rec, tau):
    rec(f"s_add_u32 m0, s{sW4K}, {wo_tile_pos(tau)}")
    rec(f"s_add_u32 s{sT0}, s{sXS}, {tau * 65536}")
    rec(f"s_and_b32 s{sT0}, s{sT0}, 0xfffff")
    dma_group(rec, SWO, [vOA + n for n in range(4)], sT0, f"wo{tau}")

def wo_switch(g, cfg):
    g.label("L_hook")
    g(f"""
    s_cmp_eq_u32 s{sJ}, 13
    s_cbranch_scc1 L_switch
    s_mov_b32 s{sHOOK}, 13
    s_cmp_eq_u32 s{sWAVE}, 2
    s_cbranch_scc0 L_switchret
    s_lshl_b32 s{sT1}, s{sB}, 5
    v_mov_b32 v10, 0
    v_mov_b32 v11, 1
    s_mov_b64 exec, 1
    buffer_atomic_add v11, v10, s[{SDBG}:{SDBG+3}], s{sT1} offen sc1
    s_mov_b64 exec, -1
    s_branch L_switchret
    """)
    g.label("L_switch")
    g(f"""
    s_lshl_b32 s{sT0}, s{sKG}, 20
    s_lshl_b32 s{sT1}, s{sCB}, 8
    s_add_u32 s{sT0}, s{sT0}, s{sT1}
    s_add_u32 s{SWO}, s{SWO}, s{sT0}
    s_addc_u32 s{SWO+1}, s{SWO+1}, 0
    s_sub_u32 s{SWO+2}, {K*K}, s{sT1}
    """)
    for i in range(4):
        g(f"s_mov_b32 s{SA+i}, s{SWO+i}\ns_mov_b32 s{SB+i}, s{SWO+i}")
    g(f"v_lshl_add_u32 v{vOA}, v3, 10, v9")
    for n in range(1, 4): g(f"v_add_u32 v{vOA+n}, {3072*n}, v{vOA}")
    for n in range(4): g(f"v_mov_b32 v{vOB+n}, v{vOA+n}")
    g(f"""
    s_lshl_b32 s{sXS}, s{sRW}, 17
    s_lshl_b32 s{sT0}, s{sWAVE}, 14
    s_add_u32 s{sXS}, s{sXS}, s{sT0}
    s_add_u32 s{sSOFFA}, s{sXS}, {2 * 65536}
    s_and_b32 s{sSOFFA}, s{sSOFFA}, 0xfffff
    s_mov_b32 s{sDB}, 65536
    s_mov_b32 s{sSTEP}, 131072
    """)
    wo_dma(g, 0); wo_dma(g, 1)
    g(f"""
    v_lshl_add_u32 v10, v3, 2, v7
    v_lshlrev_b32 v10, 8, v10
    v_xor_b32 v11, s{sWAVE}, v7
    v_lshl_add_u32 v10, v11, 6, v10
    v_lshl_add_u32 v{vWR}, v12, 4, v10
    v_add_u32 v{vWR+1}, {64*K}, v{vWR}
    v_add_u32 v{vWR+2}, {128*K}, v{vWR}
    v_lshlrev_b32 v{vOL}, 4, v{vLANE}
    v_mov_b32 v{vZ}, 0
    """)
    g(f"""
    s_add_u32 s{sT0}, s{sRW}, s{sWAVE}
    v_and_b32 v10, 1, v{vLANE}
    v_lshl_add_u32 v10, v10, 2, s{sT0}
    v_and_b32 v10, 7, v10
    v_bfe_u32 v11, v{vLANE}, 1, 1
    v_lshl_add_u32 v10, v10, 2, v11
    v_mul_u32_u24 v{vFA}, {FS}, v10
    s_lshl_b32 s{sT0}, s{sB}, 2
    s_add_u32 s{sT0}, s{sT0}, s{sKG}
    s_lshl_b32 s{sOB}, s{sT0}, 19
    s_lshl_b32 s{sT1}, s{sRB}, 15
    s_add_u32 s{sOB}, s{sOB}, s{sT1}
    s_lshl_b32 s{sT0}, s{sT0}, 5
    s_lshl_b32 s{sT1}, s{sRB}, 1
    s_add_u32 s{sT0}, s{sT0}, s{sT1}
    s_mul_i32 s{sT0}, s{sT0}, {FS}
    s_add_u32 s{sFC1}, s{sT0}, {WS_FLAGS}
    s_lshl_b32 s{sCN}, s{sB}, 5
    s_mov_b32 s{sRDY}, 0
    s_mov_b32 s{sSPIN}, 0
    s_lshl_b32 s{sOUTB}, s{sB}, 18
    s_lshl_b32 s{sT0}, s{sRB}, 17
    s_add_u32 s{sOUTB}, s{sOUTB}, s{sT0}
    s_lshl_b32 s{sT0}, s{sOWN}, 15
    s_add_u32 s{sOUTB}, s{sOUTB}, s{sT0}
    s_lshl_b32 s{sT0}, s{sCB}, 8
    s_add_u32 s{sOUTB}, s{sOUTB}, s{sT0}
    s_lshl_b32 s{sT0}, s{sWAVE}, 6
    s_add_u32 s{sOUTB}, s{sOUTB}, s{sT0}
    s_branch L_switchret
    """)

def fallback(g, site, par):
    g.label(f"L_fb_{site}")
    g("s_nop 15\ns_nop 15")
    d, f = vT, vT + 4
    rowmax4(g, par, d, f)
    for qt in range(4):
        g(f"v_max_f32 v{d+qt}, 0, v{d+qt}")
        g(f"v_sub_f32 v{f+qt}, 0, v{d+qt}")
        g(f"v_exp_f32 v{f+qt}, v{f+qt}")
    for qt in range(4):
        for k in range(4): g(f"v_sub_f32 v{NEGM(qt)+k}, v{NEGM(qt)+k}, v{d+qt}")
        for k in range(8):
            g(f"v_sub_f32 v{S(par,qt)+k}, v{S(par,qt)+k}, v{d+qt}")
            if site != "c": g(f"v_sub_f32 v{S(par^1,qt)+k}, v{S(par^1,qt)+k}, v{d+qt}")
        g(f"v_mul_f32 v{vL+qt}, v{vL+qt}, v{f+qt}")
        for k in range(0, 32, 4):
            for i in range(4): g(f"v_accvgpr_read_b32 v{LS(0)+i}, a{32*qt+k+i}")
            for i in range(4): g(f"v_mul_f32 v{LS(0)+i}, v{LS(0)+i}, v{f+qt}")
            for i in range(4): g(f"v_accvgpr_write_b32 a{32*qt+k+i}, v{LS(0)+i}")
    for it in softmax_items(par): play(g, it)
    g("s_nop 15")
    g(f"s_branch L_fbret_{site}")

def tail(g, cfg):
    SP = cfg.sm_split
    sm1 = softmax_items(1)
    homes = [448 + 8 * i for i in range(8)] + [192 + 8 * i for i in range(8)] + [256 + 8 * i for i in range(16)]
    def WOF(st, nt): return homes[st] + 4 * nt
    def wo_read(st):
        pos = wo_tile_pos(st // 2) + (st % 2) * 8192
        a = pos // (64 * K)
        r = Rec()
        for nt in range(2):
            for hf in range(2):
                r.ds(f"ds_read_b64_tr_b16 {rr(WOF(st,nt)+2*hf,2)}, v{vWR+a} offset:{pos - a*64*K + hf*4096 + nt*8}", f"wr{st}")
        return r.items
    g.label("L_loopexit")
    g.vm = [f"wo{i}" for i in range(8) for _ in range(4)]
    g.lg = ["kf"] * 8
    cc = check_items("c")
    for it in vfrag_reads(1): play(g, it)
    for it in sm1[SP:]: play(g, it)
    for it in cc[0]: play(g, it)
    g("s_nop 6")
    for it in cc[1] + cc[2]: play(g, it)
    inv = [20, 22, 24, 26]
    g.vmem(f"buffer_load_dword v{vFL}, v{vZ}, s[{SDBG}:{SDBG+3}], s{sCN} offen sc1", "cnt")
    g.wait_all(vm=False, lg=True)
    for qt in range(4): g(f"v_rcp_f32 v{inv[qt]}, v{vL+qt}")
    stamp(g, cfg, "attn_end")
    def norm(f):
        r = Rec()
        qt, s = f // 4, f % 4
        src = O(qt, 2 * s)
        tmp = 128 + 8 * (f % 4)
        dst = 160 + 4 * (f % 8)
        for i in range(8): r(f"v_accvgpr_read_b32 v{tmp+i}, a{src+i}")
        if f < cfg.npk:
            for i in range(8): r(f"v_mul_f32 v{tmp+i}, v{tmp+i}, v{inv[qt]}")
        else:
            for i in range(0, 8, 2): r(f"v_pk_mul_f32 v[{tmp+i}:{tmp+i+1}], v[{tmp+i}:{tmp+i+1}], v[{inv[qt]}:{inv[qt]+1}] op_sel_hi:[1,0]")
        for i in range(0, 8, 2): r(f"v_cvt_pk_bf16_f32 v{dst+i//2}, v{tmp+i}, v{tmp+i+1}")
        if f % 4 == 0 and f: r(f"s_add_u32 s{sST}, s{sST}, 4096")
        r.vmem(f"buffer_store_dwordx4 v[{dst}:{dst+3}], v{vOL}, s[{SWS}:{SWS+3}], s{sST} offen offset:{1024*(f%4)} sc1", "ost")
        return r.items
    mf = pv_mfmas(cfg, 1, border=True)
    nm = [it for f in range(16) for it in norm(f)]
    k = 0
    for i, m in enumerate(mf):
        g(m)
        if i >= 9:
            for it in nm[k:k + 5]: play(g, it)
            k += 5
    for it in nm[k:]: play(g, it)
    stamp(g, cfg, "stored", wait=True)
    g.wait_vm("wo7")
    g("s_barrier")
    rec = Rec(); wo_dma(rec, 8); wo_dma(rec, 9)
    d89 = rec.items
    for st in range(16):
        for it in wo_read(st): play(g, it)
        if st % 2 == 0:
            while d89[0][0] != "v": play(g, d89.pop(0))
            play(g, d89.pop(0))
    g.wait_all(vm=False, lg=True)
    g("s_barrier")
    for tau in range(10, 10 + cfg.wflag): wo_dma(g, tau)
    g.wait_vm("ost")
    stamp(g, cfg, "ost_done", wait=True)
    g(f"v_mov_b32 v11, 1\ns_mov_b64 exec, 1")
    g.vmem(f"buffer_store_dword v11, v{vZ}, s[{SWS}:{SWS+3}], s{sFO} offen sc1", "flag")
    g("s_mov_b64 exec, -1")
    g.label("L_cnt")
    g(f"v_readfirstlane_b32 s{sT1}, v{vFL}\ns_cmp_ge_u32 s{sT1}, 32\ns_cbranch_scc0 L_cntspin")
    g.label("L_cntok")
    for tau in range(10 + cfg.wflag, 16): wo_dma(g, tau)
    g.wait_vm("wo15")
    g("s_barrier")
    for st in range(16, 32):
        for it in wo_read(st): play(g, it)
    g(f"v_add_u32 v{vWR+1}, {64*K}, v{vOL}\nv_add_u32 v{vWR+2}, {128*K}, v{vOL}\nv_mov_b32 v{vWR}, v{vOL}")
    g.wait_all(vm=False, lg=True)
    g("s_barrier")
    stamp(g, cfg, "wo_done")
    def o_dma(rec, u):
        p, half = u // 2, u % 2
        rec.atom(f"""s_add_u32 s{sT2}, s{sOWN}, {p + 1}
        s_and_b32 s{sT2}, s{sT2}, 3
        s_and_b32 s{sT3}, s{sT2}, 2
        s_add_u32 s{sT3}, s{sT3}, {half}
        s_bitcmp1_b32 s{sRDY}, s{sT3}
        s_cbranch_scc0 L_poll{u}
        L_ok{u}:""")
        if u == 0: stamp(g, cfg, "poll_ok", wait=True)
        rec.atom(f"""s_add_u32 s{sT4}, s{sRW}, s{sWAVE}
        s_add_u32 s{sT4}, s{sT4}, {4 * half}
        s_and_b32 s{sT4}, s{sT4}, 7
        s_lshl_b32 s{sT4}, s{sT4}, 16
        s_lshl_b32 s{sT2}, s{sT2}, 13
        s_add_u32 s{sT4}, s{sT4}, s{sT2}
        s_add_u32 s{sT4}, s{sT4}, s{sOB}""")
        for grp in range(2):
            rec(f"s_add_u32 m0, s{sW8K}, {(u % 5) * 32768 + grp * 4096}")
            rec(f"s_add_u32 s{sT4}, s{sT4}, {grp * 4096}")
            dma_group(rec, SWS, [vOL] * 4, sT4, f"o{u}", " sc1")
    class Direct:
        def __init__(s, g): s.g = g
        def __call__(s, x): s.g(x)
        def atom(s, x): s.g(x)
        def vmem(s, x, t): s.g.vmem(x, t)
    NBUF = 10
    BF = [64 + 4 * i for i in range(NBUF)]
    def ACC(p, qt2, nt): return 128 + 16 * (p % 2) + 8 * qt2 + 4 * nt
    frs = [(u, hl, s, qt2) for u in range(8) for hl in range(4) for s in range(4) for qt2 in range(2)]
    def b_read(idx):
        u, hl, s, qt2 = frs[idx]
        pos = (u % 5) * 32768 + hl * 8192 + qt2 * 4096 + s * 1024
        a = pos // (64 * K)
        return ("d", f"ds_read_b128 {vr(BF[idx % NBUF],4)}, v{vWR+a} offset:{pos - a*64*K}", f"b{idx}")
    o_dma(Direct(g), 0); o_dma(Direct(g), 1)
    AHEAD = NBUF - 2
    BARPOS = 32 - AHEAD
    g.wait_vm("o0")
    g("s_barrier")
    for idx in range(AHEAD): play(g, b_read(idx))
    g.wait_lg("b1")
    def pstore(p):
        r = Rec(); pslot(r, p)
        for k in range(4):
            a = ACC(p, 0, 0) + 4 * k
            r.vmem(f"buffer_store_dwordx4 v[{a}:{a+3}], v{vOL}, s[{SWS}:{SWS+3}], s{sT1} offen offset:{1024*k} sc1", f"ps{p}")
        return r.items
    PL = [104 + 4 * i for i in range(6)] + [160 + 4 * i for i in range(6)]
    def pload(r, p):
        r(f"s_add_u32 s{sT0}, s{sFC2}, {p * 16384}")
        for k in range(4):
            q = PL[4 * p + k]
            r.vmem(f"buffer_load_dwordx4 v[{q}:{q+3}], v{vOL}, s[{SWS}:{SWS+3}], s{sT0} offen offset:{1024*k} sc1", f"pl{p}")
    for u in range(8):
        p = u // 2
        stamp(g, cfg, f"u{u}", wait=True)
        mf = []; streams = []
        for li in range(32):
            idx = 32 * u + li
            _, hl, s, qt2 = frs[idx]
            st = (4 * (u % 2) + hl) * 4 + s
            for nt in range(2):
                d = vr(ACC(p, qt2, nt), 4)
                mf.append(f"{MF} {d}, {rr(WOF(st,nt),4)}, {vr(BF[idx % NBUF],4)}, {'0' if st == 0 else d}")
            if idx + AHEAD < len(frs): streams.append(([b_read(idx + AHEAD)], 2 * li, 2 * li))
            if li % 2 == 1 and idx + 2 < len(frs): streams.append(([("wl", (f"b{idx+2}",), None)], 2 * li + 1, 2 * li + 1))
            if li == BARPOS - 1 and u < 7:
                streams.append(([("wv", (f"o{u+1}",), None), ("i", "s_barrier", None)], 2 * li + 1, 2 * li + 1))
        side = []
        if u % 2 == 0 and u >= 2: side += pstore(p - 1)
        if u + 2 < 8:
            r = Rec(); o_dma(r, u + 2); side += r.items
        if u == 6:
            r = Rec(); r(f"s_mul_i32 s{sFC2}, s{sOWN}, {3 * 16384}\ns_add_u32 s{sFC2}, s{sFC2}, s{sPB}")
            r(f"v_lshlrev_b32 v4, 10, v2\nv_lshl_add_u32 v4, v3, 4, v4")
            pload(r, 0); side += r.items
        streams.append((side, 6, 62, 40))
        if u == 7:
            r = Rec(); pload(r, 1); streams.append((r.items, 2, 24, 40))
            r = Rec(); pload(r, 2); streams.append((r.items, cfg.pl2_at, 62, 40))
        emit_block(g, mf, streams, name=f"u{u}")
    stamp(g, cfg, "gemm_done", wait=True)
    g.label("L_pp")
    g("s_waitcnt vmcnt(0)")
    regs = [q + i for q in PL for i in range(4)]
    g(f"v_max3_u32 v10, v{regs[0]}, v{regs[1]}, v{regs[2]}\nv_max3_u32 v11, v{regs[3]}, v{regs[4]}, v{regs[5]}")
    for i in range(6, 46, 4):
        g(f"v_max3_u32 v10, v10, v{regs[i]}, v{regs[i+1]}\nv_max3_u32 v11, v11, v{regs[i+2]}, v{regs[i+3]}")
    g(f"v_max3_u32 v10, v10, v{regs[46]}, v{regs[47]}\nv_max_u32 v10, v10, v11")
    g("v_cmp_eq_u32 vcc, -1, v10\ns_cbranch_vccnz L_ppspin")
    g.label("L_pp_ok")
    g.vm = []
    stamp(g, cfg, "poll2_ok", wait=True)
    a = ACC(3, 0, 0)
    for i in range(16): g(f"v_add_f32 v{regs[i]}, v{regs[i]}, v{regs[16+i]}\nv_add_f32 v{a+i}, v{a+i}, v{regs[32+i]}")
    for i in range(16): g(f"v_add_f32 v{a+i}, v{a+i}, v{regs[i]}")
    for i in range(8): g(f"v_cvt_pk_bf16_f32 v{64+i}, v{a+2*i}, v{a+2*i+1}")
    global PPSPIN
    r = Rec()
    for p in range(3): pload(r, p)
    PPSPIN = [it[1] for it in r.items]
    g(f"s_add_u32 s{sT0}, s{sOUTB}, 16384")
    g(f"buffer_store_dwordx4 v[64:67], v4, s[{SOUT}:{SOUT+3}], s{sOUTB} offen")
    g(f"buffer_store_dwordx4 v[68:71], v4, s[{SOUT}:{SOUT+3}], s{sT0} offen")
    if cfg.diag:
        g("s_waitcnt vmcnt(0)")
        stamp(g, cfg, "end", wait=True)
        stamp(g, cfg, "x", wait=True, record=False)
        g(f"s_lshl_b32 s{sT0}, s2, 2\ns_add_u32 s{sT0}, s{sT0}, s{sWAVE}\ns_lshl_b32 s{sT0}, s{sT0}, 8\ns_add_u32 s{sT0}, s{sT0}, {WS_STAMP}")
        g(f"v_lshlrev_b32 v10, 2, v{vLANE}")
        g(f"buffer_store_dword v{vST}, v10, s[{SWS}:{SWS+3}], s{sT0} offen")
    g.label("L_end")
    g("s_endpgm")

def spins(g, cfg):
    g.label("L_cntspin")
    g(f"""
    s_add_u32 s{sSPIN}, s{sSPIN}, 1
    s_cmp_gt_u32 s{sSPIN}, {SPIN_MAX}
    s_cbranch_scc1 L_cntok
    s_sleep 2
    buffer_load_dword v{vFL}, v{vZ}, s[{SDBG}:{SDBG+3}], s{sCN} offen sc1
    s_waitcnt vmcnt(0)
    s_branch L_cnt
    """)
    g.label("L_ppspin")
    g(f"s_add_u32 s{sSPIN}, s{sSPIN}, 1\ns_cmp_gt_u32 s{sSPIN}, {SPIN_MAX}\ns_cbranch_scc1 L_pp_ok")
    for l in PPSPIN: g(l)
    g("s_branch L_pp")
    for u in range(8):
        g.label(f"L_poll{u}")
        g(f"""
        buffer_load_dword v{vFL}, v{vFA}, s[{SWS}:{SWS+3}], s{sFC1} offen sc1
        s_add_u32 s{sSPIN}, s{sSPIN}, 1
        s_waitcnt vmcnt(0)
        v_cmp_eq_u32 vcc, 1, v{vFL}
        s_cmp_gt_u32 s{sSPIN}, {SPIN_MAX}
        s_cbranch_scc1 L_ok{u}
        s_mov_b32 s{sRDY}, vcc_lo
        s_bitcmp1_b32 s{sRDY}, s{sT3}
        s_cbranch_scc1 L_ok{u}
        s_branch L_poll{u}
        """)

Cfg.npk = 6
Cfg.wflag = 3
Cfg.pl2_at = 36

def build(cfg):
    g = Gen()
    setup(g, cfg)
    late = qproj(g, cfg)
    attention(g, cfg, late)
    tail(g, cfg)
    wo_switch(g, cfg)
    spins(g, cfg)
    fallback(g, "a", 0); fallback(g, "b", 1); fallback(g, "c", 1)
    errs = check_hazards(g.lines, "lin")
    L = g.lines
    i0 = L.index("L_loop:"); i1 = L.index("L_loopexit:")
    errs += check_hazards(L[i1 - 40:i1] + L[i0:i0 + 60], "backedge")
    ib = L.index("    s_branch L_blk1"); i2 = L.index("L_blk1:")
    errs += check_hazards(L[ib - 40:ib] + L[i2:i2 + 60], "prologue->blk1")
    ie = L.index("    s_cbranch_scc1 L_loopexit")
    errs += check_hazards(L[ie - 40:ie] + L[i1:i1 + 60], "exit")
    for e in errs: print("HAZARD", e, file=sys.stderr)
    src = (HEADER + (("; STAMPS " + " ".join(STAMPS) + "\n") if cfg.diag else "") + "; @launch grid=(256,1,1) block=(256,1,1) lds=163840\n"
        '.amdgcn_target "amdgcn-amd-amdhsa--gfx950"\n.text\n'
        f".globl {KNAME}\n.p2align 8\n.type {KNAME},@function\n{KNAME}:\n"
        + g.text() +
        '.section .rodata,"a"\n.p2align 6\n'
        f".amdhsa_kernel {KNAME}\n"
        "  .amdhsa_next_free_vgpr 512\n  .amdhsa_next_free_sgpr 102\n  .amdhsa_accum_offset 256\n"
        "  .amdhsa_group_segment_fixed_size 0\n  .amdhsa_kernarg_size 64\n  .amdhsa_user_sgpr_count 2\n"
        "  .amdhsa_user_sgpr_kernarg_segment_ptr 1\n  .amdhsa_system_sgpr_workgroup_id_x 1\n"
        ".end_amdhsa_kernel\n")
    return src, errs

if __name__ == "__main__":
    cfg = Cfg()
    out = sys.argv[1]
    for kv in sys.argv[2:]:
        k, v = kv.split("=")
        cur = getattr(cfg, k)
        setattr(cfg, k, bool(eval(v)) if isinstance(cur, bool) else (v if isinstance(cur, str) else type(cur)(eval(v))))
    src, errs = build(cfg)
    open(out, "w").write(src)
    print(" ".join(f"{n}:{c}" for n, c in REPORT))
    print(f"wrote {out}: {src.count(chr(10))} lines, {len(errs)} hazard findings")
```

```python
def classify(it):
    k, s, _ = it
    if k in ("v", "v2"): return "D", 8
    if k == "d": return "V", 4
    if k in ("wv", "wl"): return "N", 4
    lines = [l.strip() for l in s.split("\n") if l.strip() and not l.strip().endswith(":")]
    if len(lines) == 1:
        l = lines[0]
        if l.startswith("v_mfma"): return "M", 0
        if l.startswith(("v_exp", "v_rcp", "v_pk_")): return "V", 8
        if l.startswith("v_"): return "V", 4
        return "N", 4
    if lines[-1].startswith("v_mfma"): return "M", 4 * (len(lines) - 1)
    if all(l.startswith("s_") for l in lines): return "N", 4 * len(lines)
    return "V", 4 * len(lines)

def order(post):
    out = list(post)
    def mem(x): return x[1][0] in ("d", "v")
    def valu(x): return x[1][0] == "i" and classify(x[1])[0] == "V"
    changed = True
    while changed:
        changed = False
        for i in range(len(out) - 1):
            if valu(out[i]) and not valu(out[i + 1]) and out[i][0] != out[i + 1][0]:
                out[i], out[i + 1] = out[i + 1], out[i]; changed = True
    return out

def schedule(n, streams, dma_gap=4, state=None):
    st = []
    for s in streams:
        its = list(s["items"])
        if not its: continue
        costs = [max(classify(i)[1], 4) for i in its]
        st.append(dict(items=its, costs=costs, tot=sum(costs), done=0, pos=0, first=s["first"], last=min(s["last"], n - 1), ahead=s.get("ahead", 6)))
    gaps = []
    state = state if state is not None else {"since_dma": 99}
    for g in range(n):
        out = []
        def fill():
            pre, post = [], []
            free_n, free_a = 4, 8
            used = set()
            while True:
                best = None
                for si, s in enumerate(st):
                    if s["pos"] >= len(s["items"]) or g < s["first"]: continue
                    target = s["tot"] * (g - s["first"] + 1) / (s["last"] - s["first"] + 1)
                    urg = target - s["done"]
                    forced = g >= s["last"]
                    kind, c = classify(s["items"][s["pos"]])
                    if not forced:
                        if urg < -s["ahead"] + max(c, 4) * 0.5 - 4: continue
                        if kind == "V" and c > free_a and not (free_a == 8 and c > 8): continue
                        if kind == "N" and c > free_a + (free_n if si not in used or not post else 0) and not (free_a == 8 and free_n == 4): continue
                        if kind == "D" and (free_a < 8 or state["since_dma"] < dma_gap): continue
                    pr = urg / s["tot"] * (s["last"] - s["first"] + 1) + (1000 if forced else 0) + (3 if kind == "D" else 0)
                    if best is None or pr > best[0]: best = (pr, si, kind, c)
                if best is None: break
                _, si, kind, c = best
                s = st[si]; it = s["items"][s["pos"]]
                s["done"] += s["costs"][s["pos"]]; s["pos"] += 1
                if kind == "M":
                    return pre + order(post) + [it], True
                in_post = any(x[0] == si for x in post)
                if kind == "N" and free_n == 4 and not in_post:
                    pre.append((si, it)); free_n = 0; free_a -= c - 4
                else:
                    post.append((si, it)); free_a -= c
                if kind == "D": state["since_dma"] = 0
                used.add(si)
            return pre + order(post), False
        while True:
            its, more = fill()
            out += [x[1] if isinstance(x[0], int) else x for x in its]
            state["since_dma"] += 1
            if not more: break
        gaps.append(out)
    for s in st:
        assert s["pos"] == len(s["items"])
    return gaps

def gap_report(mfmas, gaps):
    tot = 0
    for gap in gaps:
        t = 4; first = True
        for it in gap:
            kind, c = classify(it)
            if kind == "M":
                tot += max(16, t + c); t = 4; continue
            if kind in "VD": t = max(t, 8)
            t += 12 if kind == "D" else c
        tot += max(16, t)
    return tot
```

```python
import sys, math, struct
from core import *
from sched import schedule, gap_report

KNAME = "standalone__mha_block_cached__near_ridge_kernel"
HEADER = """; Kernarg layout for this problem (64 bytes, ptrs only, base s[0:1]):
;   offset   0: d_in[0] x  shape=(8, 256, 512) dtype=bfloat16 strides=(262144, 1024, 2) contiguous=True
;   offset   8: d_in[1] k_cache  shape=(8, 32, 1024, 128) dtype=bfloat16 strides=(8388608, 262144, 256, 2) contiguous=True
;   offset  16: d_in[2] v_cache  shape=(8, 32, 1024, 128) dtype=bfloat16 strides=(8388608, 262144, 256, 2) contiguous=True
;   offset  24: d_in[3] wq  shape=(512, 4096) dtype=bfloat16 strides=(8192, 2) contiguous=True
;   offset  32: d_in[4] wo  shape=(4096, 512) dtype=bfloat16 strides=(1024, 2) contiguous=True
;   offset  40: d_out     shape=(8, 256, 512) dtype=bfloat16 (2 bytes/elem)
;   offset  48: d_debug   256 bytes
;   offset  56: d_ws      268435456 bytes workspace
"""
K = 1024
VRING = 64 * K
WOST = 128 * K
XSL = [16 * K, 80 * K]
WSL = [0, 8, 64, 72, 0, 8, 64, 72, 48, 56, 112, 120, 128, 136, 144, 152]
def kslot(j): return 16 * K * (j % 4)
def vslot(j): return VRING + 16 * K * (j % 4)

sWAVE = 3
SX, SWQ, SK, SV, SWO, SWS, SOUT, SDBG, SA, SB = 4, 8, 12, 16, 20, 24, 28, 32, 36, 40
sSOFFA, sSOFFB, sLDSA, sDB, sJ, sKD, sVD, sSTEP = 44, 45, 46, 47, 48, 49, 50, 51
sB, sH, sKG, sRB, sCB, sRW = 52, 53, 54, 55, 56, 57
sT0, sT1, sT2, sT3 = 58, 59, 60, 61
sTHR, sC4K, sC4V = 62, 63, 80
sC16K, sSPIN, sOWN, sPB, sFO, sFC1, sFC2, sOUTB = 66, 67, 68, 69, 70, 76, 77, 78
sW4K = 81
SZ = 72
sZO = 64
sXS, sXL = 82, 83
sSC = 84
sOB, sST = 88, 89
sSTAMP, sSTC = 90, 92
sROT, sT4, sWS_, sWL, sRDY, sCN, sW8K = 94, 95, 96, 97, 98, 99, 100

vLANE = 1
vKA = 16
vVA = 20
vOA = 32
vOB = 36
vRO = 40
vL = 44
vCK, vST = 48, 49
vWO = 50
vT = 52
NT = 8
vONE = 60
vSEN = 28
vWR = 13
vOL, vFL, vFA, vZ = 40, 41, 42, 43
def P(par, qt): return 64 + 16 * par + 4 * qt
def NEGM(qt): return 96 + 4 * qt
def LS(qt): return 112 + 4 * qt
def S(par, qt): return 128 + 32 * par + 8 * qt
def Q(qt, s): return 192 + 16 * qt + 4 * s
def QACC(qt, tile): return 128 + 32 * qt + 4 * tile
def O(qt, t): return 32 * qt + 4 * t
def KF(kt, s): return 128 + 16 * kt + 4 * s
def VF(t): return 160 + 4 * t
def WF(st, tile): return 128 + 32 * st + 4 * tile
XH = [256, 288, 320, 352, 448, 480, 64, 96]
def XF(c, ks, qt): return XH[c] + 16 * ks + 4 * qt

WS_PART = 16 * K * K
WS_FLAGS = 28 * K * K
WS_STAMP = 32 * K * K
WS_QDUMP = 64 * K * K
FS = 128
SPIN_MAX = 400000
MF = "v_mfma_f32_16x16x32_bf16"
def f32bits(x): return struct.unpack("<I", struct.pack("<f", x))[0]

class Cfg:
    diag = 0
    qdump = False
    thr = 16384.0
    nt_kv = True
    rot = True
    tlb = True
    wotouch = True
    qs = "a"
    pv_b = True
    qk_b = False
    sm_split = 24
    lead = 2
    dloop = False
    zmode = "loop"

STAMPS = []
def stamp(g, cfg, name, first=False, rep=1, record=True, wait=False):
    if not cfg.diag:
        return
    if cfg.dloop and name not in ("start", "x", "blk", "end"):
        return
    if not cfg.dloop and name == "blk":
        return
    if record:
        STAMPS.extend([name] if rep == 1 else [f"{name}{i}" for i in range(rep)])
    if first:
        g(f"s_mov_b64 s[{sSTC}:{sSTC+1}], 1")
    else:
        if wait: g("s_waitcnt lgkmcnt(0)")
        g(f"s_mov_b64 exec, s[{sSTC}:{sSTC+1}]\nv_mov_b32 v{vST}, s{sSTAMP}\ns_mov_b64 exec, -1\ns_lshl_b64 s[{sSTC}:{sSTC+1}], s[{sSTC}:{sSTC+1}], 1")
    g(f"{'s_memrealtime' if cfg.diag == 1 else 's_memtime'} s[{sSTAMP}:{sSTAMP+1}]")

class Rec(Gen):
    def __init__(self):
        super().__init__(); self.items = []
    def __call__(self, s):
        for l in s.strip("\n").split("\n"):
            l = l.strip()
            if l: self.items.append(("i", l, None))
    def vmem(self, s, tag=None): self.items.append(("v", s, tag))
    def ds(self, s, tag=None): self.items.append(("d", s, tag))
    def atom(self, s): self.items.append(("i", s.strip(), None))
    def wv(self, *tags): self.items.append(("wv", tags, None))
    def wl(self, *tags): self.items.append(("wl", tags, None))

def play(g, it):
    k, s, tag = it
    if k == "i": g(s)
    elif k == "v": g.vmem(s, tag)
    elif k == "wv": g.wait_vm(*s)
    elif k == "wl": g.wait_lg(*s)
    else: g.ds(s, tag)

REPORT = []
SSTATE = {"since_dma": 99}
def emit_block(g, mfmas, streams, name=None, dma_gap=4):
    ss = []
    for t in streams:
        d = dict(items=t[0], first=t[1], last=t[2])
        if len(t) > 3: d["ahead"] = t[3]
        ss.append(d)
    gaps = schedule(len(mfmas), ss, dma_gap=dma_gap, state=SSTATE)
    if name: REPORT.append((name, gap_report(mfmas, gaps)))
    for m, gap in zip(mfmas, gaps):
        g(m)
        for it in gap:
            play(g, it)

def srd(g, d, lo, hi, size, off=None):
    if off is None:
        g(f"s_mov_b32 s{d}, s{lo}\ns_mov_b32 s{d+1}, s{hi}")
    else:
        g(f"s_add_u32 s{d}, s{lo}, {off}\ns_addc_u32 s{d+1}, s{hi}, 0")
    g(f"s_mov_b32 s{d+2}, {size}\ns_mov_b32 s{d+3}, 0x20000")

def dma_group(g, srdreg, vregs, soff, tag, fl=""):
    for n in range(4):
        g.vmem(f"buffer_load_dwordx4 v{vregs[n]}, s[{srdreg}:{srdreg+3}], s{soff} offen offset:{1024*n}{fl} lds", tag)

def setup(g, cfg):
    g(f"""
    s_cmp_ge_u32 s2, 256
    s_cbranch_scc1 L_end
    s_load_dwordx16 s[64:79], s[0:1], 0
    """)
    stamp(g, cfg, "start", first=True)
    g(f"""
    v_lshrrev_b32 v2, 6, v0
    v_and_b32 v{vLANE}, 63, v0
    v_readfirstlane_b32 s{sWAVE}, v2
    s_bfe_u32 s{sT0}, s2, 0x20003
    s_lshr_b32 s{sT1}, s2, 5
    s_and_b32 s{sB}, s2, 1
    s_lshl_b32 s{sB}, s{sB}, 2
    s_add_u32 s{sB}, s{sB}, s{sT0}
    s_bfe_u32 s{sKG}, s2, 0x20001
    s_lshl_b32 s{sH}, s{sKG}, 3
    s_add_u32 s{sH}, s{sH}, s{sT1}
    s_and_b32 s{sRB}, s{sT1}, 1
    s_lshr_b32 s{sCB}, s{sT1}, 1
    s_lshl_b32 s{sT0}, s{sT0}, 1
    s_add_u32 s{sRW}, s{sT0}, s{sRB}
    s_add_u32 s{sROT}, s{sT0}, s{sT1}
    s_and_b32 s{sROT}, s{sROT}, 7
    s_lshl_b32 s{sW4K}, s{sWAVE}, 12
    s_lshl_b32 s{sW8K}, s{sWAVE}, 13
    """)
    if not cfg.rot:
        g(f"s_mov_b32 s{sROT}, 0\ns_mov_b32 s{sRW}, 0")
    g(f"""
    v_and_b32 v2, 15, v{vLANE}
    v_lshrrev_b32 v3, 4, v{vLANE}
    v_lshrrev_b32 v5, 3, v{vLANE}
    v_and_b32 v6, 7, v{vLANE}
    v_bfe_u32 v7, v{vLANE}, 2, 2
    v_xor_b32 v8, v6, v3
    v_lshlrev_b32 v8, 4, v8
    v_lshl_add_u32 v{vRO}, v5, 10, v8
    v_xor_b32 v8, 64, v{vRO}
    v_add_u32 v{vRO+1}, 7168, v8
    v_add_u32 v{vRO+2}, {2*7168}, v{vRO}
    v_add_u32 v{vRO+3}, {3*7168}, v8
    v_lshlrev_b32 v8, 2, v3
    v_xor_b32 v8, v2, v8
    v_lshlrev_b32 v9, 4, v8
    v_lshl_add_u32 v{vWO}, v3, 13, v9
    v_add_u32 v{vWO+1}, 31744, v{vWO}
    s_lshl_b32 s{sXS}, s{sB}, 18
    s_lshl_b32 s{sT0}, s{sWAVE}, 16
    s_add_u32 s{sXS}, s{sXS}, s{sT0}
    s_lshl_b32 s{sWS_}, s{sH}, 8
    s_add_u32 s{sWS_}, s{sWS_}, s{sT0}
    s_lshl_b32 s{sWL}, s{sWAVE}, 11
    s_lshl_b32 s{sXL}, s{sROT}, 19
    s_waitcnt lgkmcnt(0)
    """)
    srd(g, SWQ, 70, 71, 4 * K * K)
    srd(g, SX, 64, 65, 2 * K * K)

def setup_late(g, cfg):
    g(f"s_lshl_b32 s{sT0}, s{sB}, 5\ns_add_u32 s{sT0}, s{sT0}, s{sH}\ns_lshl_b32 s{sT1}, s{sT0}, 18")
    srd(g, SK, 66, 67, 256 * K, f"s{sT1}")
    srd(g, SV, 68, 69, 256 * K, f"s{sT1}")
    srd(g, SWO, 72, 73, 4 * K * K)
    srd(g, SWS, 78, 79, 128 * K * K)
    srd(g, SOUT, 74, 75, 2 * K * K)
    srd(g, SDBG, 76, 77, 256)
    for i in range(4):
        g(f"s_mov_b32 s{SA+i}, s{SK+i}\ns_mov_b32 s{SB+i}, s{SV+i}")
    g(f"""
    s_lshl_b32 s{sST}, s{sT0}, 16
    s_lshl_b32 s{sT1}, s{sWAVE}, 14
    s_add_u32 s{sST}, s{sST}, s{sT1}
    s_lshl_b32 s{sT0}, s{sT0}, 2
    s_add_u32 s{sT0}, s{sT0}, s{sWAVE}
    s_mul_i32 s{sT0}, s{sT0}, {FS}
    s_add_u32 s{sFO}, s{sT0}, {WS_FLAGS}
    s_add_u32 s{sOWN}, s{sKG}, s{sCB}
    s_and_b32 s{sOWN}, s{sOWN}, 3
    s_lshl_b32 s{sT0}, s{sB}, 1
    s_add_u32 s{sT0}, s{sT0}, s{sRB}
    s_lshl_b32 s{sT0}, s{sT0}, 2
    s_add_u32 s{sT0}, s{sT0}, s{sCB}
    s_mul_i32 s{sPB}, s{sT0}, {16 * 12288}
    s_mul_i32 s{sT1}, s{sWAVE}, 12288
    s_add_u32 s{sPB}, s{sPB}, s{sT1}
    s_add_u32 s{sPB}, s{sPB}, {WS_PART}
    s_mul_i32 s{sT1}, s{sKG}, {4 * 12288}
    s_add_u32 s{sT1}, s{sT1}, s{sPB}
    s_add_u32 s{SZ}, s{SWS}, s{sT1}
    s_addc_u32 s{SZ+1}, s{SWS+1}, 0
    s_mov_b32 s{SZ+2}, 12288
    s_mov_b32 s{SZ+3}, 0x20000
    v_lshlrev_b32 v4, 4, v{vLANE}
    v_mov_b32 v11, 0
    """)
    for i in range(4): g(f"v_mov_b32 v{vSEN+i}, -1")
    g("s_mov_b64 exec, 1")
    g.vmem(f"buffer_store_dword v11, v11, s[{SWS}:{SWS+3}], s{sFO} offen sc1", "fz")
    if cfg.tlb:
        g(f"s_lshl_b32 s{sT2}, s{sB}, 18\ns_lshl_b32 s{sT3}, s{sKG}, 20")
        g.vmem(f"buffer_load_dword v{vT+4}, v11, s[{SK}:{SK+3}], 0 offen nt", "tlb")
        g.vmem(f"buffer_load_dword v{vT+5}, v11, s[{SV}:{SV+3}], 0 offen nt", "tlb")
        g.vmem(f"buffer_load_dword v{vT+6}, v11, s[{SOUT}:{SOUT+3}], s{sT2} offen nt", "tlb")
        g.vmem(f"buffer_load_dword v{vT+7}, v11, s[{SWO}:{SWO+3}], s{sT3} offen nt", "tlb")
    g("s_mov_b64 exec, -1")
    g(f"""
    v_xor_b32 v8, v2, v3
    v_lshlrev_b32 v8, 4, v8
    v_lshl_add_u32 v{vOA}, v3, 8, v8
    v_xor_b32 v{vOA+1}, 64, v{vOA}
    v_xor_b32 v{vOA+2}, 0x80, v{vOA}
    v_xor_b32 v{vOA+3}, 0xc0, v{vOA}
    v_lshlrev_b32 v8, 1, v3
    v_xor_b32 v8, v2, v8
    v_lshlrev_b32 v8, 4, v8
    v_lshl_add_u32 v{vOB}, v3, 8, v8
    v_xor_b32 v{vOB+1}, 0x80, v{vOB}
    v_mov_b32 v{vOB+2}, v{vOB}
    v_mov_b32 v{vOB+3}, v{vOB+1}
    """)
    g(f"""
    v_and_b32 v12, 3, v{vLANE}
    v_lshl_add_u32 v13, v3, 3, v7
    v_lshlrev_b32 v13, 8, v13
    v_lshl_add_u32 v13, v7, 6, v13
    v_lshl_add_u32 v{vVA}, v12, 4, v13
    v_add_u32 v{vVA+4}, {64*K}, v{vVA}
    """)
    for s in range(1, 4):
        g(f"v_xor_b32 v{vVA+s}, {s<<6}, v{vVA}\nv_xor_b32 v{vVA+4+s}, {s<<6}, v{vVA+4}")
    g(f"""
    v_lshrrev_b32 v13, 1, v2
    v_xor_b32 v13, v13, v3
    v_lshlrev_b32 v13, 4, v13
    v_lshl_add_u32 v13, v2, 7, v13
    v_add_u32 v13, s{sW8K}, v13
    v_add_u32 v{vKA}, {XSL[0]}, v13
    v_add_u32 v{vKA+2}, {XSL[1]}, v13
    v_xor_b32 v{vKA+1}, 64, v{vKA}
    v_xor_b32 v{vKA+3}, 64, v{vKA+2}
    s_mov_b32 s{sTHR}, {f32bits(cfg.thr):#x}
    s_mov_b32 s{sSC}, {f32bits(math.log2(math.e) / math.sqrt(128.0)):#x}
    s_mov_b32 s{sSC+1}, s{sSC}
    """)
    for i in range(4):
        g(f"v_mov_b32 v{vL+i}, 0\nv_mov_b32 v{vONE+i}, 0x3f803f80")

def kaddr_items():
    r = Rec()
    r(f"""
    v_xor_b32 v10, v2, v3
    v_lshlrev_b32 v10, 4, v10
    v_lshl_add_u32 v{vKA}, v2, 8, v10
    """)
    for s in range(1, 4): r(f"v_xor_b32 v{vKA+s}, {s<<6}, v{vKA}")
    return r.items

def vaddr_items():
    r = Rec()
    r(f"""
    v_lshl_add_u32 v10, v3, 2, v7
    v_and_b32 v11, 7, v10
    v_lshlrev_b32 v10, 8, v10
    v_lshl_add_u32 v10, v11, 5, v10
    v_lshl_add_u32 v10, v12, 3, v10
    v_add_u32 v{vVA}, {vslot(0)}, v10
    """)
    for t in range(1, 8): r(f"v_xor_b32 v{vVA+t}, {t<<5}, v{vVA}")
    return r.items

def kv_group(g, cfg, kind, j):
    lds, srdreg, vb = (kslot(j), SK, vOA) if kind == "K" else (vslot(j), SV, vOB)
    g(f"s_add_u32 m0, s{sW4K}, {lds}\ns_add_u32 s{sT0}, s{sW4K}, {16384 * j}")
    dma_group(g, srdreg, [vb + n for n in range(4)], sT0, f"{kind}{j}", " nt" if cfg.nt_kv else "")

def x_dma(g, cfg, c, grp):
    if grp == 0:
        g(f"s_add_u32 s{sT4}, s{sROT}, {c}\ns_and_b32 s{sT4}, s{sT4}, 7\ns_lshl_b32 s{sT4}, s{sT4}, 7")
    g(f"s_add_u32 m0, s{sW8K}, {XSL[c % 2] + grp * 4096}")
    g(f"s_add_u32 s{sT4}, s{sT4}, " + (f"s{sXS}" if grp == 0 else "32768"))
    dma_group(g, SX, [vRO + n for n in range(4)], sT4, f"x{c}")

def w_dma(g, cfg, k):
    g(f"s_add_u32 s{sT0}, s{sXL}, {k << 18}\ns_and_b32 s{sT0}, s{sT0}, 0x3fffff")
    g(f"s_add_u32 m0, s{sWL}, {WSL[k] * K}")
    g(f"s_add_u32 s{sT0}, s{sT0}, s{sWS_}")
    for n in range(2):
        g.vmem(f"buffer_load_dwordx4 v{vWO+n}, s[{SWQ}:{SWQ+3}], s{sT0} offen offset:{1024*n} lds", f"w{k}")

def kfrag_reads(off):
    r = Rec()
    for s in range(4):
        for kt in range(2):
            r.ds(f"ds_read_b128 {ar(KF(kt,s),4)}, v{vKA+s} offset:{off + kt*4096}", "kf")
    return r.items

def vfrag_reads(sub):
    r = Rec()
    for t in range(8):
        for hf in range(2):
            r.ds(f"ds_read_b64_tr_b16 {ar(VF(t)+2*hf,2)}, v{vVA+t} offset:{sub*8192 + hf*4096}", "vf")
    return r.items

QS = {
 "a": dict(xread=[-1, 0, 2, 3, 5, 6, 8, 9],
           d={0: "x2a x2b", 1: "w4 w5 x3a", 2: "x3b w6 w8", 3: "x4a x4b", 4: "w7 w9 x5a", 5: "x5b w10 w11", 6: "x6a x6b",
              7: "w12 w13 x7a", 8: "x7b w14 w15", 9: "K0 V0", 10: "K1", 12: "V1", 14: "K2", 16: "V2"}),
 "b": dict(xread=[-1, 0, 2, 4, 5, 7, 9, 11],
           d={0: "x2a x2b", 1: "w4 x3a", 2: "w5 w6 x3b", 3: "w7 x4a", 4: "x4b w8", 5: "x5a w9 w10", 6: "x5b w11", 7: "x6a x6b",
              8: "w12 x7a", 9: "x7b w13", 10: "w14 w15 K0", 11: "V0", 12: "K1", 13: "V1", 15: "K2", 16: "V2"}),
}

def qproj(g, cfg):
    qs = QS[cfg.qs]
    def load(g, name):
        if name[0] == "x": x_dma(g, cfg, int(name[1]), "ab".index(name[2]))
        elif name[0] == "w": w_dma(g, cfg, int(name[1:]))
        else: kv_group(g, cfg, name[0], int(name[1]))
    for name in "w0 x0a x0b w1 x1a x1b w2 w3".split(): load(g, name)
    setup_late(g, cfg)
    xlast = qs["xread"][7]
    free_after = {"K0": 5, "V0": 7, "K1": qs["xread"][6] + 1, "K2": qs["xread"][6] + 1, "V1": xlast + 1, "V2": xlast + 1}
    for k in range(4, 8): free_after[f"w{k}"] = k - 4
    for c in range(2, 8): free_after[f"x{c}a"] = free_after[f"x{c}b"] = qs["xread"][c - 2] + 1
    for h in range(-1, 16):
        g.comment(f"---- H({h})")
        if h + 1 <= 15:
            assert f"w{h+1}" not in " ".join(v for kk, v in qs["d"].items() if kk >= h).split()
            g.wait_vm(f"w{h+1}")
        else: g.wait_vm("K0", "K1", "V0")
        if h >= 0: g.wait_all(vm=False, lg=True)
        g("s_barrier")
        stamp(g, cfg, f"H{h}")
        xr = []
        if h in qs["xread"]:
            c = qs["xread"].index(h)
            assert h < 2 * c or c == 0
            assert f"x{c}b" not in " ".join(v for kk, v in qs["d"].items() if kk >= h).split()
            rd = Rec(); rd.wv(f"x{c}")
            for ks in range(2):
                for qt in range(4):
                    rd.ds(f"ds_read_b128 {rr(XF(c,ks,qt),4)}, v{vKA+2*(c%2)+ks} offset:{qt*2048}", f"xr{c}")
            xr = rd.items
        rd = Rec()
        if h + 1 <= 15:
            k = h + 1
            pos = WSL[k] * K
            st, base = (1, 64 * K) if 64 * K <= pos < 128 * K else (0, 0 if pos < 64 * K else 128 * K)
            assert (base == 128 * K) == (st == 0 and k > 9)
            for s in range(4):
                for tb in range(2):
                    for hf in range(2):
                        rd.ds(f"ds_read_b64_tr_b16 {ar(WF(k%2, 2*s+tb)+2*hf,2)}, v{vVA+4*st+s} offset:{pos - base + hf*1024 + tb*8}")
        else:
            rd.items = kfrag_reads(0)
        wr = rd.items
        dm = Rec()
        for name in qs["d"].get(h, "").split():
            assert h >= free_after.get(name, 0), name
            load(dm, name)
        misc = Rec()
        if h == 9:
            for s in range(4): misc(f"v_add_u32 v{vVA+s}, {128*K}, v{vVA+s}")
        if h == 14:
            assert xlast < 14
            misc.items += kaddr_items()
        if h == 15: misc.items += vaddr_items()
        if h == 11 and cfg.wotouch:
            misc(f"v_lshlrev_b32 v10, 6, v{vLANE}")
            misc.atom(f"s_lshl_b32 s{sT1}, s2, 14\ns_add_u32 s{sT1}, s{sT1}, s{sW4K}")
            misc.vmem(f"buffer_load_dword v{vT+2}, v10, s[{SWO}:{SWO+3}], s{sT1} offen", "touch")
        if h >= 8:
            for i in range(16 * (h - 8), 16 * (h - 7)): misc(f"v_accvgpr_write_b32 a{i}, 0")
        if h == -1:
            for it in wr + xr: play(g, it)
            continue
        c = h // 2
        order = [(qt, tile) for tile in range(8) for qt in range(4)]
        if h == 15: order = [(qt, tile) for qt in range(3, -1, -1) for tile in range(7, -1, -1)]
        mf = []
        for qt, tile in order:
            cc = "0" if h == 0 else vr(QACC(qt, tile), 4)
            mf.append(f"{MF} {vr(QACC(qt,tile),4)}, {ar(WF(h%2,tile),4)}, {rr(XF(c, h%2, qt),4)}, {cc}")
        emit_block(g, mf, [(dm.items, 0, 31, 40), (wr, 0, 20), (xr, 20, 27), (misc.items, 0, 31)], name=f"H{h}")
    return [n for n in qs["d"].get(16, "").split()]

def softmax_items(par):
    r = Rec()
    def T(i): return vT + (i % NT)
    pend = []
    for pi in range(16):
        qt, k = pi // 4, 2 * (pi % 4)
        r(f"v_exp_f32 v{T(2*pi)}, v{S(par,qt)+k}")
        if pi > 0:
            q0 = (pi - 1) // 4
            r(f"v_cvt_pk_bf16_f32 v{P(par,q0)+(pi-1)%4}, v{T(2*pi-2)}, v{T(2*pi-1)}")
        r(f"v_exp_f32 v{T(2*pi+1)}, v{S(par,qt)+k+1}")
        if pi % 4 == 1 and pi > 1:
            q0 = pi // 4 - 1
            r(f"{MF} {vr(LS(q0),4)}, {vr(vONE,4)}, {vr(P(par,q0),4)}, 0")
    r.atom(f"s_nop 0\nv_cvt_pk_bf16_f32 v{P(par,3)+3}, v{T(30)}, v{T(31)}")
    r.atom(f"s_nop 1\n{MF} {vr(LS(3),4)}, {vr(vONE,4)}, {vr(P(par,3),4)}, 0")
    return r.items

def check_items(site):
    r = Rec()
    r(f"v_add_f32 v{vCK}, v{LS(0)}, v{LS(1)}")
    r(f"v_add_f32 v{vCK}, v{vCK}, v{LS(2)}")
    a = r.items; r = Rec()
    r(f"v_add_f32 v{vCK}, v{vCK}, v{LS(3)}")
    r(f"v_cmp_nge_f32 vcc, s{sTHR}, v{vCK}")
    r.atom(f"s_cbranch_vccnz L_fb_{site}\nL_fbret_{site}:")
    b = r.items; r = Rec()
    for qt in range(4): r(f"v_add_f32 v{vL+qt}, v{vL+qt}, v{LS(qt)}")
    return a, b, r.items

def qk_mfmas(cfg, par, first_c=None):
    mf = []
    for s in range(4):
        order = [(kt, qt) for qt in range(4) for kt in range(2)] if (cfg.qk_b or s == 3) else [(kt, qt) for kt in range(2) for qt in range(4)]
        for kt, qt in order:
            d = vr(S(par, qt) + 4 * kt, 4)
            c = d if s else (first_c if first_c is not None else vr(NEGM(qt), 4))
            mf.append(f"{MF} {d}, {ar(KF(kt,s),4)}, {vr(Q(qt,s),4)}, {c}")
    return mf

def pv_mfmas(cfg, par, border=None):
    border = cfg.pv_b if border is None else border
    order = [(t, qt) for qt in range(4) for t in range(8)] if border else [(t, qt) for t in range(8) for qt in range(4)]
    return [f"{MF} {ar(O(qt,t),4)}, {ar(VF(t),4)}, {vr(P(par,qt),4)}, {ar(O(qt,t),4)}" for t, qt in order]

def rowmax4(g, par, dst, tmp):
    for qt in range(4):
        s = S(par, qt)
        g(f"v_max3_f32 v{dst+qt}, v{s}, v{s+1}, v{s+2}")
        g(f"v_max3_f32 v{tmp+qt}, v{s+3}, v{s+4}, v{s+5}")
    for qt in range(4):
        s = S(par, qt)
        g(f"v_max3_f32 v{dst+qt}, v{dst+qt}, v{s+6}, v{s+7}")
    for qt in range(4): g(f"v_max_f32 v{dst+qt}, v{dst+qt}, v{tmp+qt}")
    for op in ("v_permlane16_swap_b32", "v_permlane32_swap_b32"):
        for qt in range(4): g(f"v_mov_b32 v{tmp+qt}, v{dst+qt}")
        g("s_nop 1")
        for qt in range(4): g(f"{op} v{dst+qt}, v{tmp+qt}")
        for qt in range(4): g(f"v_max_f32 v{dst+qt}, v{dst+qt}, v{tmp+qt}")

def loop_dma_items(cfg):
    fl = " nt" if cfg.nt_kv else ""
    a = Rec()
    a(f"s_lshl_b32 s{sZO}, s{sJ}, 10")
    zf = {"loop": " sc1", "plain": "", "nt": " nt", "off": " offset:4095 sc1", "sc01": " sc0 sc1"}[cfg.zmode]
    if cfg.zmode == "off": a.items[-1] = ("i", f"s_mov_b32 s{sZO}, 0x10000", None)
    a.vmem(f"buffer_store_dwordx4 v[{vSEN}:{vSEN+3}], v4, s[{SZ}:{SZ+3}], s{sZO} offen{zf}", "z")
    a.atom(f"s_mov_b32 m0, s{sLDSA}\ns_add_u32 s{sSOFFB}, s{sSOFFA}, s{sDB}")
    dma_group(a, SA, [vOA + n for n in range(4)], sSOFFA, "d", fl)
    b = Rec()
    b.atom(f"s_add_u32 m0, s{sLDSA}, {VRING}\ns_add_u32 s{sSOFFA}, s{sSOFFA}, s{sSTEP}")
    dma_group(b, SB, [vOB + n for n in range(4)], sSOFFB, "d", fl)
    b.atom(f"s_and_b32 s{sSOFFA}, s{sSOFFA}, 0xfffff\ns_add_u32 s{sLDSA}, s{sLDSA}, 16384\ns_and_b32 s{sLDSA}, s{sLDSA}, 0xffff")
    return a.items, b.items

def ring_step_items(sC, sD, base, n):
    r = Rec()
    r.atom(f"s_add_u32 s{sC}, s{sC}, 1\ns_and_b32 s{sC}, s{sC}, 3\ns_cselect_b32 s{sD}, s{sC16K}, {(-49152) & 0xffffffff:#x}")
    for i in range(n):
        r(f"v_add_u32 v{base+i}, s{sD}, v{base+i}")
    return r.items

def attention(g, cfg, late):
    SP = cfg.sm_split
    stamp(g, cfg, "qdone", wait=True)
    lr = Rec()
    for name in late: kv_group(lr, cfg, name[0], int(name[1]))
    lr = lr.items
    for p in range(63, -1, -1):
        src = 128 + 2 * p
        if p % 6 == 0 and lr:
            while lr[0][0] != "v": play(g, lr.pop(0))
            play(g, lr.pop(0))
        g(f"v_pk_mul_f32 v[{src}:{src+1}], v[{src}:{src+1}], s[{sSC}:{sSC+1}]")
        if p < 63:
            g(f"v_cvt_pk_bf16_f32 v{192+p+1}, v{src+2}, v{src+3}")
    g(f"v_cvt_pk_bf16_f32 v192, v128, v129")
    if cfg.qdump:
        g(f"s_add_u32 s{sT0}, s{sST}, {WS_QDUMP}\nv_lshlrev_b32 v10, 4, v{vLANE}")
        for f in range(16):
            if f % 4 == 0 and f: g(f"s_add_u32 s{sT0}, s{sT0}, 4096")
            g(f"buffer_store_dwordx4 v[{192+4*f}:{195+4*f}], v10, s[{SWS}:{SWS+3}], s{sT0} offen offset:{1024*(f%4)}")
        g("s_waitcnt vmcnt(0)")
    g(f"""
    s_mov_b32 s{sJ}, 0
    s_mov_b32 s{sC4K}, 0
    s_mov_b32 s{sC4V}, 0
    s_mov_b32 s{sSTEP}, 16384
    s_mov_b32 s{sC16K}, 16384
    s_mov_b32 s{sDB}, 0
    s_add_u32 s{sSOFFA}, s{sW4K}, {3*16384}
    s_add_u32 s{sLDSA}, s{sW4K}, {kslot(3)}
    s_waitcnt lgkmcnt(0)
    """)
    stamp(g, cfg, "qconv")
    mf = qk_mfmas(cfg, 0, first_c="0")
    kr = kfrag_reads(8192)
    da, db = loop_dma_items(cfg)
    emit_block(g, mf, [(da, 0, 24)] + [(kr[2*i:2*i+2], 8*i+7, min(31, 8*i+8)) for i in range(4)])
    g("s_nop 5")
    rowmax4(g, 0, vT, vT + 4)
    for qt in range(4):
        for k in range(8): g(f"v_sub_f32 v{S(0,qt)+k}, v{S(0,qt)+k}, v{vT+qt}")
        for k in range(4): g(f"v_sub_f32 v{NEGM(qt)+k}, 0, v{vT+qt}")
    sm0 = softmax_items(0); sm1 = softmax_items(1)
    for it in sm0[:SP]: play(g, it)
    g("s_branch L_blk1")

    ca = check_items("a"); cb = check_items("b")
    g(".p2align 6")
    g.label("L_loop")
    g("s_waitcnt vmcnt(13) lgkmcnt(0)")
    g("s_barrier")
    stamp(g, cfg, "it", rep=15)
    stamp(g, cfg, "blk", rep=62)
    g(f"s_cmp_eq_u32 s{sJ}, 13\ns_cbranch_scc1 L_hook")
    g.label("L_switchret")
    F = cfg.lead
    emit_block(g, pv_mfmas(cfg, 1), [(cb[2], 0, 2), (kfrag_reads(8192), 0, 24), (ring_step_items(sC4V, sVD, vVA, 8), 3, 31), (da, 3, 31), (sm0[:SP], F, 31)], name="B0")
    g.label("L_blk1")
    g("s_waitcnt lgkmcnt(0)")
    stamp(g, cfg, "blk", record=False)
    emit_block(g, qk_mfmas(cfg, 1), [(vfrag_reads(0), 0, 26), (sm0[SP:], 0, 25), (ca[0], 26, 27), (ring_step_items(sC4K, sKD, vKA, 4), 26, 29), (ca[1], 30, 31)], name="B1")
    g("s_waitcnt lgkmcnt(0)")
    stamp(g, cfg, "blk", record=False)
    emit_block(g, pv_mfmas(cfg, 0), [(ca[2], 0, 2), (kfrag_reads(0), 0, 24), (db, 3, 31), (sm1[:SP], F, 31)], name="B2")
    g(f"s_cmp_eq_u32 s{sJ}, 15\ns_cbranch_scc1 L_loopexit")
    g("s_waitcnt lgkmcnt(0)")
    stamp(g, cfg, "blk", record=False)
    tl = Rec(); tl(f"s_add_u32 s{sJ}, s{sJ}, 1\ns_nop 0\ns_nop 0")
    emit_block(g, qk_mfmas(cfg, 0), [(vfrag_reads(1), 0, 26), (sm1[SP:], 0, 25), (cb[0], 26, 27), (tl.items, 27, 29), (cb[1], 30, 31)], name="B3")
    g("s_branch L_loop")

def wo_tile_pos(tau):
    if tau < 2: return WOST + 16 * K * tau
    if tau < 10:
        m = (tau - 2) // 2
        return kslot(16 + m) if tau % 2 == 0 else vslot(16 + m)
    return wo_tile_pos(tau - 8)

def wo_dma(rec, tau):
    rec(f"s_add_u32 m0, s{sW4K}, {wo_tile_pos(tau)}")
    rec(f"s_add_u32 s{sT0}, s{sXS}, {tau * 65536}")
    rec(f"s_and_b32 s{sT0}, s{sT0}, 0xfffff")
    dma_group(rec, SWO, [vOA + n for n in range(4)], sT0, f"wo{tau}")

def wo_switch(g, cfg):
    g.label("L_hook")
    g(f"""
    s_cmp_eq_u32 s{sWAVE}, 2
    s_cbranch_scc0 L_switch
    s_lshl_b32 s{sT1}, s{sB}, 5
    v_mov_b32 v10, 0
    v_mov_b32 v11, 1
    s_mov_b64 exec, 1
    buffer_atomic_add v11, v10, s[{SDBG}:{SDBG+3}], s{sT1} offen sc1
    s_mov_b64 exec, -1
    """)
    g.label("L_switch")
    g(f"""
    s_lshl_b32 s{sT0}, s{sKG}, 20
    s_lshl_b32 s{sT1}, s{sCB}, 8
    s_add_u32 s{sT0}, s{sT0}, s{sT1}
    s_add_u32 s{SWO}, s{SWO}, s{sT0}
    s_addc_u32 s{SWO+1}, s{SWO+1}, 0
    s_sub_u32 s{SWO+2}, {K*K}, s{sT1}
    """)
    for i in range(4):
        g(f"s_mov_b32 s{SA+i}, s{SWO+i}\ns_mov_b32 s{SB+i}, s{SWO+i}")
    g(f"v_lshl_add_u32 v{vOA}, v3, 10, v9")
    for n in range(1, 4): g(f"v_add_u32 v{vOA+n}, {3072*n}, v{vOA}")
    for n in range(4): g(f"v_mov_b32 v{vOB+n}, v{vOA+n}")
    g(f"""
    s_lshl_b32 s{sXS}, s{sRW}, 17
    s_lshl_b32 s{sT0}, s{sWAVE}, 14
    s_add_u32 s{sXS}, s{sXS}, s{sT0}
    s_add_u32 s{sSOFFA}, s{sXS}, {2 * 65536}
    s_and_b32 s{sSOFFA}, s{sSOFFA}, 0xfffff
    s_mov_b32 s{sDB}, 65536
    s_mov_b32 s{sSTEP}, 131072
    """)
    wo_dma(g, 0); wo_dma(g, 1)
    g(f"""
    v_lshl_add_u32 v10, v3, 2, v7
    v_lshlrev_b32 v10, 8, v10
    v_xor_b32 v11, s{sWAVE}, v7
    v_lshl_add_u32 v10, v11, 6, v10
    v_lshl_add_u32 v{vWR}, v12, 4, v10
    v_add_u32 v{vWR+1}, {64*K}, v{vWR}
    v_add_u32 v{vWR+2}, {128*K}, v{vWR}
    v_lshlrev_b32 v{vOL}, 4, v{vLANE}
    v_mov_b32 v{vZ}, 0
    """)
    g(f"""
    s_add_u32 s{sT0}, s{sRW}, s{sWAVE}
    v_and_b32 v10, 1, v{vLANE}
    v_lshl_add_u32 v10, v10, 2, s{sT0}
    v_and_b32 v10, 7, v10
    v_bfe_u32 v11, v{vLANE}, 1, 1
    v_lshl_add_u32 v10, v10, 2, v11
    v_mul_u32_u24 v{vFA}, {FS}, v10
    s_lshl_b32 s{sT0}, s{sB}, 2
    s_add_u32 s{sT0}, s{sT0}, s{sKG}
    s_lshl_b32 s{sOB}, s{sT0}, 19
    s_lshl_b32 s{sT1}, s{sRB}, 15
    s_add_u32 s{sOB}, s{sOB}, s{sT1}
    s_lshl_b32 s{sT0}, s{sT0}, 5
    s_lshl_b32 s{sT1}, s{sRB}, 1
    s_add_u32 s{sT0}, s{sT0}, s{sT1}
    s_mul_i32 s{sT0}, s{sT0}, {FS}
    s_add_u32 s{sFC1}, s{sT0}, {WS_FLAGS}
    s_lshl_b32 s{sCN}, s{sB}, 5
    s_mov_b32 s{sRDY}, 0
    s_mov_b32 s{sSPIN}, 0
    s_lshl_b32 s{sOUTB}, s{sB}, 18
    s_lshl_b32 s{sT0}, s{sRB}, 17
    s_add_u32 s{sOUTB}, s{sOUTB}, s{sT0}
    s_lshl_b32 s{sT0}, s{sOWN}, 15
    s_add_u32 s{sOUTB}, s{sOUTB}, s{sT0}
    s_lshl_b32 s{sT0}, s{sCB}, 8
    s_add_u32 s{sOUTB}, s{sOUTB}, s{sT0}
    s_lshl_b32 s{sT0}, s{sWAVE}, 6
    s_add_u32 s{sOUTB}, s{sOUTB}, s{sT0}
    s_branch L_switchret
    """)

def fallback(g, site, par):
    g.label(f"L_fb_{site}")
    g("s_nop 15\ns_nop 15")
    d, f = vT, vT + 4
    rowmax4(g, par, d, f)
    for qt in range(4):
        g(f"v_max_f32 v{d+qt}, 0, v{d+qt}")
        g(f"v_sub_f32 v{f+qt}, 0, v{d+qt}")
        g(f"v_exp_f32 v{f+qt}, v{f+qt}")
    for qt in range(4):
        for k in range(4): g(f"v_sub_f32 v{NEGM(qt)+k}, v{NEGM(qt)+k}, v{d+qt}")
        for k in range(8):
            g(f"v_sub_f32 v{S(par,qt)+k}, v{S(par,qt)+k}, v{d+qt}")
            if site != "c": g(f"v_sub_f32 v{S(par^1,qt)+k}, v{S(par^1,qt)+k}, v{d+qt}")
        g(f"v_mul_f32 v{vL+qt}, v{vL+qt}, v{f+qt}")
        for k in range(0, 32, 4):
            for i in range(4): g(f"v_accvgpr_read_b32 v{LS(0)+i}, a{32*qt+k+i}")
            for i in range(4): g(f"v_mul_f32 v{LS(0)+i}, v{LS(0)+i}, v{f+qt}")
            for i in range(4): g(f"v_accvgpr_write_b32 a{32*qt+k+i}, v{LS(0)+i}")
    for it in softmax_items(par): play(g, it)
    g("s_nop 15")
    g(f"s_branch L_fbret_{site}")

def tail(g, cfg):
    SP = cfg.sm_split
    sm1 = softmax_items(1)
    homes = [448 + 8 * i for i in range(8)] + [192 + 8 * i for i in range(8)] + [256 + 8 * i for i in range(16)]
    def WOF(st, nt): return homes[st] + 4 * nt
    def wo_read(st):
        pos = wo_tile_pos(st // 2) + (st % 2) * 8192
        a = pos // (64 * K)
        r = Rec()
        for nt in range(2):
            for hf in range(2):
                r.ds(f"ds_read_b64_tr_b16 {rr(WOF(st,nt)+2*hf,2)}, v{vWR+a} offset:{pos - a*64*K + hf*4096 + nt*8}", f"wr{st}")
        return r.items
    g.label("L_loopexit")
    g.vm = []
    for i in range(8): g.vm += (["z"] if i in (2, 4, 6) else []) + [f"wo{i}"] * 4
    g.lg = ["kf"] * 8
    cc = check_items("c")
    for it in vfrag_reads(1): play(g, it)
    for it in sm1[SP:]: play(g, it)
    for it in cc[0]: play(g, it)
    g("s_nop 6")
    for it in cc[1] + cc[2]: play(g, it)
    inv = [20, 22, 24, 26]
    g.vmem(f"buffer_load_dword v{vFL}, v{vZ}, s[{SDBG}:{SDBG+3}], s{sCN} offen sc1", "cnt")
    g.wait_all(vm=False, lg=True)
    for qt in range(4): g(f"v_rcp_f32 v{inv[qt]}, v{vL+qt}")
    stamp(g, cfg, "attn_end")
    def norm(f):
        r = Rec()
        qt, s = f // 4, f % 4
        src = O(qt, 2 * s)
        tmp = 128 + 8 * (f % 4)
        dst = 160 + 4 * (f % 8)
        for i in range(8): r(f"v_accvgpr_read_b32 v{tmp+i}, a{src+i}")
        if f < cfg.npk:
            for i in range(8): r(f"v_mul_f32 v{tmp+i}, v{tmp+i}, v{inv[qt]}")
        else:
            for i in range(0, 8, 2): r(f"v_pk_mul_f32 v[{tmp+i}:{tmp+i+1}], v[{tmp+i}:{tmp+i+1}], v[{inv[qt]}:{inv[qt]+1}] op_sel_hi:[1,0]")
        for i in range(0, 8, 2): r(f"v_cvt_pk_bf16_f32 v{dst+i//2}, v{tmp+i}, v{tmp+i+1}")
        if f % 4 == 0 and f: r(f"s_add_u32 s{sST}, s{sST}, 4096")
        r.vmem(f"buffer_store_dwordx4 v[{dst}:{dst+3}], v{vOL}, s[{SWS}:{SWS+3}], s{sST} offen offset:{1024*(f%4)} sc1", "ost")
        return r.items
    mf = pv_mfmas(cfg, 1, border=True)
    nm = [it for f in range(16) for it in norm(f)]
    k = 0
    for i, m in enumerate(mf):
        g(m)
        if i >= 9:
            for it in nm[k:k + 5]: play(g, it)
            k += 5
    for it in nm[k:]: play(g, it)
    stamp(g, cfg, "stored", wait=True)
    g.wait_vm("wo7")
    g("s_barrier")
    rec = Rec(); wo_dma(rec, 8); wo_dma(rec, 9)
    d89 = rec.items
    for st in range(16):
        for it in wo_read(st): play(g, it)
        if st % 2 == 0:
            while d89[0][0] != "v": play(g, d89.pop(0))
            play(g, d89.pop(0))
    g.wait_all(vm=False, lg=True)
    g("s_barrier")
    for tau in range(10, 10 + cfg.wflag): wo_dma(g, tau)
    g.wait_vm("ost")
    stamp(g, cfg, "ost_done", wait=True)
    g(f"v_mov_b32 v11, 1\ns_mov_b64 exec, 1")
    g.vmem(f"buffer_store_dword v11, v{vZ}, s[{SWS}:{SWS+3}], s{sFO} offen sc1", "flag")
    g("s_mov_b64 exec, -1")
    g.label("L_cnt")
    g(f"v_readfirstlane_b32 s{sT1}, v{vFL}\ns_cmp_ge_u32 s{sT1}, 32\ns_cbranch_scc0 L_cntspin")
    g.label("L_cntok")
    for tau in range(10 + cfg.wflag, 16): wo_dma(g, tau)
    g.wait_vm("wo15")
    g("s_barrier")
    for st in range(16, 32):
        for it in wo_read(st): play(g, it)
    g(f"v_add_u32 v{vWR+1}, {64*K}, v{vOL}\nv_add_u32 v{vWR+2}, {128*K}, v{vOL}\nv_mov_b32 v{vWR}, v{vOL}")
    g.wait_all(vm=False, lg=True)
    g("s_barrier")
    stamp(g, cfg, "wo_done")
    def o_dma(rec, u):
        p, half = u // 2, u % 2
        rec.atom(f"""s_add_u32 s{sT2}, s{sOWN}, {p + 1}
        s_and_b32 s{sT2}, s{sT2}, 3
        s_and_b32 s{sT3}, s{sT2}, 2
        s_add_u32 s{sT3}, s{sT3}, {half}
        s_bitcmp1_b32 s{sRDY}, s{sT3}
        s_cbranch_scc0 L_poll{u}
        L_ok{u}:""")
        if u == 0: stamp(g, cfg, "poll_ok", wait=True)
        rec.atom(f"""s_add_u32 s{sT4}, s{sRW}, s{sWAVE}
        s_add_u32 s{sT4}, s{sT4}, {4 * half}
        s_and_b32 s{sT4}, s{sT4}, 7
        s_lshl_b32 s{sT4}, s{sT4}, 16
        s_lshl_b32 s{sT2}, s{sT2}, 13
        s_add_u32 s{sT4}, s{sT4}, s{sT2}
        s_add_u32 s{sT4}, s{sT4}, s{sOB}""")
        for grp in range(2):
            rec(f"s_add_u32 m0, s{sW8K}, {(u % 5) * 32768 + grp * 4096}")
            rec(f"s_add_u32 s{sT4}, s{sT4}, {grp * 4096}")
            dma_group(rec, SWS, [vOL] * 4, sT4, f"o{u}", " sc1")
    class Direct:
        def __init__(s, g): s.g = g
        def __call__(s, x): s.g(x)
        def atom(s, x): s.g(x)
        def vmem(s, x, t): s.g.vmem(x, t)
    NBUF = 10
    BF = [64 + 4 * i for i in range(NBUF)]
    def ACC(p, qt2, nt): return 128 + 16 * (p % 2) + 8 * qt2 + 4 * nt
    frs = [(u, hl, s, qt2) for u in range(8) for hl in range(4) for s in range(4) for qt2 in range(2)]
    def b_read(idx):
        u, hl, s, qt2 = frs[idx]
        pos = (u % 5) * 32768 + hl * 8192 + qt2 * 4096 + s * 1024
        a = pos // (64 * K)
        return ("d", f"ds_read_b128 {vr(BF[idx % NBUF],4)}, v{vWR+a} offset:{pos - a*64*K}", f"b{idx}")
    o_dma(Direct(g), 0); o_dma(Direct(g), 1)
    AHEAD = NBUF - 2
    BARPOS = 32 - AHEAD
    g.wait_vm("o0")
    g("s_barrier")
    for idx in range(AHEAD): play(g, b_read(idx))
    g.wait_lg("b1")
    def pstore(p):
        r = Rec(); r(f"s_movk_i32 s{sT1}, {p * 4096}")
        for k in range(4):
            a = ACC(p, 0, 0) + 4 * k
            r.vmem(f"buffer_store_dwordx4 v[{a}:{a+3}], v{vOL}, s[{SZ}:{SZ+3}], s{sT1} offen offset:{1024*k} sc1", f"ps{p}")
        return r.items
    PL = [104 + 4 * i for i in range(6)] + [160 + 4 * i for i in range(6)]
    def pload(r, p):
        r(f"s_add_u32 s{sT0}, s{sKG}, {3 - p}\ns_and_b32 s{sT0}, s{sT0}, 3\ns_mul_i32 s{sT0}, s{sT0}, {4 * 12288}\ns_add_u32 s{sT0}, s{sT0}, s{sPB}\ns_add_u32 s{sT0}, s{sT0}, {p * 4096}")
        for k in range(4):
            q = PL[4 * p + k]
            r.vmem(f"buffer_load_dwordx4 v[{q}:{q+3}], v{vOL}, s[{SWS}:{SWS+3}], s{sT0} offen offset:{1024*k} sc1", f"pl{p}")
    for u in range(8):
        p = u // 2
        stamp(g, cfg, f"u{u}", wait=True)
        mf = []; streams = []
        for li in range(32):
            idx = 32 * u + li
            _, hl, s, qt2 = frs[idx]
            st = (4 * (u % 2) + hl) * 4 + s
            for nt in range(2):
                d = vr(ACC(p, qt2, nt), 4)
                mf.append(f"{MF} {d}, {rr(WOF(st,nt),4)}, {vr(BF[idx % NBUF],4)}, {'0' if st == 0 else d}")
            if idx + AHEAD < len(frs): streams.append(([b_read(idx + AHEAD)], 2 * li, 2 * li))
            if li % 2 == 1 and idx + 2 < len(frs): streams.append(([("wl", (f"b{idx+2}",), None)], 2 * li + 1, 2 * li + 1))
            if li == BARPOS - 1 and u < 7:
                streams.append(([("wv", (f"o{u+1}",), None), ("i", "s_barrier", None)], 2 * li + 1, 2 * li + 1))
        side = []
        if u % 2 == 0 and u >= 2: side += pstore(p - 1)
        if u + 2 < 8:
            r = Rec(); o_dma(r, u + 2); side += r.items
        if u == 6:
            r = Rec()
            r(f"v_lshlrev_b32 v4, 10, v2\nv_lshl_add_u32 v4, v3, 4, v4")
            pload(r, 0); side += r.items
        streams.append((side, 6, 62, 40))
        if u == 7:
            r = Rec(); pload(r, 1); streams.append((r.items, 2, 24, 40))
            r = Rec(); pload(r, 2); streams.append((r.items, cfg.pl2_at, 62, 40))
        emit_block(g, mf, streams, name=f"u{u}")
    stamp(g, cfg, "gemm_done", wait=True)
    g.label("L_pp")
    g("s_waitcnt vmcnt(0)")
    regs = [q + i for q in PL for i in range(4)]
    g(f"v_max3_u32 v10, v{regs[0]}, v{regs[1]}, v{regs[2]}\nv_max3_u32 v11, v{regs[3]}, v{regs[4]}, v{regs[5]}")
    for i in range(6, 46, 4):
        g(f"v_max3_u32 v10, v10, v{regs[i]}, v{regs[i+1]}\nv_max3_u32 v11, v11, v{regs[i+2]}, v{regs[i+3]}")
    g(f"v_max3_u32 v10, v10, v{regs[46]}, v{regs[47]}\nv_max_u32 v10, v10, v11")
    g("v_cmp_eq_u32 vcc, -1, v10\ns_cbranch_vccnz L_ppspin")
    g.label("L_pp_ok")
    g.vm = []
    stamp(g, cfg, "poll2_ok", wait=True)
    a = ACC(3, 0, 0)
    for i in range(16): g(f"v_add_f32 v{regs[i]}, v{regs[i]}, v{regs[16+i]}\nv_add_f32 v{a+i}, v{a+i}, v{regs[32+i]}")
    for i in range(16): g(f"v_add_f32 v{a+i}, v{a+i}, v{regs[i]}")
    for i in range(8): g(f"v_cvt_pk_bf16_f32 v{64+i}, v{a+2*i}, v{a+2*i+1}")
    global PPSPIN
    r = Rec()
    for p in range(3): pload(r, p)
    PPSPIN = [it[1] for it in r.items]
    g(f"s_add_u32 s{sT0}, s{sOUTB}, 16384")
    g(f"buffer_store_dwordx4 v[64:67], v4, s[{SOUT}:{SOUT+3}], s{sOUTB} offen")
    g(f"buffer_store_dwordx4 v[68:71], v4, s[{SOUT}:{SOUT+3}], s{sT0} offen")
    if cfg.diag:
        g("s_waitcnt vmcnt(0)")
        stamp(g, cfg, "end", wait=True)
        stamp(g, cfg, "x", wait=True, record=False)
        g(f"s_lshl_b32 s{sT0}, s2, 2\ns_add_u32 s{sT0}, s{sT0}, s{sWAVE}\ns_lshl_b32 s{sT0}, s{sT0}, 8\ns_add_u32 s{sT0}, s{sT0}, {WS_STAMP}")
        g(f"v_lshlrev_b32 v10, 2, v{vLANE}")
        g(f"buffer_store_dword v{vST}, v10, s[{SWS}:{SWS+3}], s{sT0} offen")
    g.label("L_end")
    g("s_endpgm")

def spins(g, cfg):
    g.label("L_cntspin")
    g(f"""
    s_add_u32 s{sSPIN}, s{sSPIN}, 1
    s_cmp_gt_u32 s{sSPIN}, {SPIN_MAX}
    s_cbranch_scc1 L_cntok
    s_sleep 2
    buffer_load_dword v{vFL}, v{vZ}, s[{SDBG}:{SDBG+3}], s{sCN} offen sc1
    s_waitcnt vmcnt(0)
    s_branch L_cnt
    """)
    g.label("L_ppspin")
    g(f"s_add_u32 s{sSPIN}, s{sSPIN}, 1\ns_cmp_gt_u32 s{sSPIN}, {SPIN_MAX}\ns_cbranch_scc1 L_pp_ok")
    for l in PPSPIN: g(l)
    g("s_branch L_pp")
    for u in range(8):
        g.label(f"L_poll{u}")
        g(f"""
        buffer_load_dword v{vFL}, v{vFA}, s[{SWS}:{SWS+3}], s{sFC1} offen sc1
        s_add_u32 s{sSPIN}, s{sSPIN}, 1
        s_waitcnt vmcnt(0)
        v_cmp_eq_u32 vcc, 1, v{vFL}
        s_cmp_gt_u32 s{sSPIN}, {SPIN_MAX}
        s_cbranch_scc1 L_ok{u}
        s_mov_b32 s{sRDY}, vcc_lo
        s_bitcmp1_b32 s{sRDY}, s{sT3}
        s_cbranch_scc1 L_ok{u}
        s_branch L_poll{u}
        """)

Cfg.npk = 6
Cfg.wflag = 3
Cfg.pl2_at = 36

def build(cfg):
    g = Gen()
    setup(g, cfg)
    late = qproj(g, cfg)
    attention(g, cfg, late)
    tail(g, cfg)
    wo_switch(g, cfg)
    spins(g, cfg)
    fallback(g, "a", 0); fallback(g, "b", 1); fallback(g, "c", 1)
    errs = check_hazards(g.lines, "lin")
    L = g.lines
    i0 = L.index("L_loop:"); i1 = L.index("L_loopexit:")
    errs += check_hazards(L[i1 - 40:i1] + L[i0:i0 + 60], "backedge")
    ib = L.index("    s_branch L_blk1"); i2 = L.index("L_blk1:")
    errs += check_hazards(L[ib - 40:ib] + L[i2:i2 + 60], "prologue->blk1")
    ie = L.index("    s_cbranch_scc1 L_loopexit")
    errs += check_hazards(L[ie - 40:ie] + L[i1:i1 + 60], "exit")
    for e in errs: print("HAZARD", e, file=sys.stderr)
    src = (HEADER + (("; STAMPS " + " ".join(STAMPS) + "\n") if cfg.diag else "") + "; @launch grid=(256,1,1) block=(256,1,1) lds=163840\n"
        '.amdgcn_target "amdgcn-amd-amdhsa--gfx950"\n.text\n'
        f".globl {KNAME}\n.p2align 8\n.type {KNAME},@function\n{KNAME}:\n"
        + g.text() +
        '.section .rodata,"a"\n.p2align 6\n'
        f".amdhsa_kernel {KNAME}\n"
        "  .amdhsa_next_free_vgpr 512\n  .amdhsa_next_free_sgpr 102\n  .amdhsa_accum_offset 256\n"
        "  .amdhsa_group_segment_fixed_size 0\n  .amdhsa_kernarg_size 64\n  .amdhsa_user_sgpr_count 2\n"
        "  .amdhsa_user_sgpr_kernarg_segment_ptr 1\n  .amdhsa_system_sgpr_workgroup_id_x 1\n"
        ".end_amdhsa_kernel\n")
    return src, errs

if __name__ == "__main__":
    cfg = Cfg()
    out = sys.argv[1]
    for kv in sys.argv[2:]:
        k, v = kv.split("=")
        cur = getattr(cfg, k)
        setattr(cfg, k, bool(eval(v)) if isinstance(cur, bool) else (v if isinstance(cur, str) else type(cur)(eval(v))))
    src, errs = build(cfg)
    open(out, "w").write(src)
    print(" ".join(f"{n}:{c}" for n, c in REPORT))
    print(f"wrote {out}: {src.count(chr(10))} lines, {len(errs)} hazard findings")
```

```python
import sys, math, struct
from core import *
from sched import schedule, gap_report

KNAME = "standalone__mha_block_cached__near_ridge_kernel"
HEADER = """; Kernarg layout for this problem (64 bytes, ptrs only, base s[0:1]):
"""
K = 1024
XSL = [0, 64 * K]
WSL = [32, 40, 96, 104, 48, 56, 112, 120] * 2
WB = [32 * K, 96 * K]
TP = {}

sWAVE = 3
SX, SWQ, SK, SV, SWO, SWS, SOUT, SDBG, SA, SB = 4, 8, 12, 16, 20, 24, 28, 32, 36, 40
sSOFFA, sSOFFB, sLDSA, sDB, sJ, sKD, sVD, sSTEP = 44, 45, 46, 47, 48, 49, 50, 51
sB, sH, sKG, sRB, sCB, sRW = 52, 53, 54, 55, 56, 57
sT0, sT1, sT2, sT3 = 58, 59, 60, 61
sTHR, sC4K, sC4V = 62, 63, 80
sC16K, sSPIN, sOWN, sPB, sFO, sFC1, sFC2, sOUTB = 66, 67, 68, 69, 70, 76, 77, 78
sW4K = 81
sPC = 44
SZ = 72
sZO = 64
sXS, sXL = 82, 83
sSC = 84
sOB, sST = 88, 89
sSTAMP, sSTC = 90, 92
sROT, sT4, sWS_, sWL, sRDY, sCN, sW8K = 94, 95, 96, 97, 98, 99, 100

vLANE = 1
vKA = 16
vVA = 20
vOA = 32
vOB = 36
vOW = 40
vRO = 40
vL = 44
vCK, vST = 48, 49
vWO = 50
vT = 52
NT = 8
vONE = 60
vSEN = 28
vWR = 13
vOL, vFL, vFA, vZ = 4, 38, 39, 50
def P(par, qt): return 64 + 16 * par + 4 * qt
def NEGM(qt): return 96 + 4 * qt
def LS(qt): return 112 + 4 * qt
def S(par, qt): return 128 + 32 * par + 8 * qt
def Q(qt, s): return 192 + 16 * qt + 4 * s
def QACC(qt, tile): return 128 + 32 * qt + 4 * tile
def O(qt, t): return 32 * qt + 4 * t
def KF(kt, s): return 128 + 16 * kt + 4 * s
def VF(t): return 160 + 4 * t
def WF(st, tile): return 128 + 32 * st + 4 * tile
XH = [256, 288, 320, 352, 448, 480, 64, 96]
def XF(c, ks, qt): return XH[c] + 16 * ks + 4 * qt

WS_PART = 16 * K * K
WS_FLAGS = 28 * K * K
WS_STAMP = 32 * K * K
WS_QDUMP = 64 * K * K
FS = 128
SPIN_MAX = 400000
MF = "v_mfma_f32_16x16x32_bf16"
def f32bits(x): return struct.unpack("<I", struct.pack("<f", x))[0]

class Cfg:
    diag = 0
    qdump = False
    thr = 16384.0
    nt_kv = True
    rot = True
    tlb = True
    wotouch = True
    qs = "b"
    pv_b = True
    qk_b = False
    sm_split = 24
    lead = 2
    dloop = False
    zmode = "loop"

STAMPS = []
def stamp(g, cfg, name, first=False, rep=1, record=True, wait=False):
    if not cfg.diag:
        return
    if cfg.dloop and name not in ("start", "x", "blk", "end"):
        return
    if not cfg.dloop and name == "blk":
        return
    if record:
        STAMPS.extend([name] if rep == 1 else [f"{name}{i}" for i in range(rep)])
    if first:
        g(f"s_mov_b64 s[{sSTC}:{sSTC+1}], 1")
    else:
        if wait: g("s_waitcnt lgkmcnt(0)")
        g(f"s_mov_b64 exec, s[{sSTC}:{sSTC+1}]\nv_mov_b32 v{vST}, s{sSTAMP}\ns_mov_b64 exec, -1\ns_lshl_b64 s[{sSTC}:{sSTC+1}], s[{sSTC}:{sSTC+1}], 1")
    g(f"{'s_memrealtime' if cfg.diag == 1 else 's_memtime'} s[{sSTAMP}:{sSTAMP+1}]")

class Rec(Gen):
    def __init__(self):
        super().__init__(); self.items = []
    def __call__(self, s):
        for l in s.strip("\n").split("\n"):
            l = l.strip()
            if l: self.items.append(("i", l, None))
    def vmem(self, s, tag=None): self.items.append(("v", s, tag))
    def ds(self, s, tag=None): self.items.append(("d", s, tag))
    def atom(self, s): self.items.append(("i", s.strip(), None))
    def wv(self, *tags): self.items.append(("wv", tags, None))
    def wl(self, *tags): self.items.append(("wl", tags, None))

def play(g, it):
    k, s, tag = it
    if k == "i": g(s)
    elif k == "v": g.vmem(s, tag)
    elif k == "wv": g.wait_vm(*s)
    elif k == "wl": g.wait_lg(*s)
    else: g.ds(s, tag)

REPORT = []
SSTATE = {"since_dma": 99}
def emit_block(g, mfmas, streams, name=None, dma_gap=4):
    ss = []
    for t in streams:
        d = dict(items=t[0], first=t[1], last=t[2])
        if len(t) > 3: d["ahead"] = t[3]
        ss.append(d)
    gaps = schedule(len(mfmas), ss, dma_gap=dma_gap, state=SSTATE)
    if name: REPORT.append((name, gap_report(mfmas, gaps)))
    for m, gap in zip(mfmas, gaps):
        g(m)
        for it in gap:
            play(g, it)

def srd(g, d, lo, hi, size, off=None):
    if off is None:
        g(f"s_mov_b32 s{d}, s{lo}\ns_mov_b32 s{d+1}, s{hi}")
    else:
        g(f"s_add_u32 s{d}, s{lo}, {off}\ns_addc_u32 s{d+1}, s{hi}, 0")
    g(f"s_mov_b32 s{d+2}, {size}\ns_mov_b32 s{d+3}, 0x20000")

def dma_group(g, srdreg, vregs, soff, tag, fl=""):
    for n in range(4):
        g.vmem(f"buffer_load_dwordx4 v{vregs[n]}, s[{srdreg}:{srdreg+3}], s{soff} offen offset:{1024*n}{fl} lds", tag)

def setup(g, cfg):
    g(f"""
    s_cmp_ge_u32 s2, 256
    s_cbranch_scc1 L_end
    s_load_dwordx16 s[64:79], s[0:1], 0
    """)
    stamp(g, cfg, "start", first=True)
    g(f"""
    v_lshrrev_b32 v2, 6, v0
    v_and_b32 v{vLANE}, 63, v0
    v_readfirstlane_b32 s{sWAVE}, v2
    s_bfe_u32 s{sT0}, s2, 0x20003
    s_lshr_b32 s{sT1}, s2, 5
    s_and_b32 s{sB}, s2, 1
    s_lshl_b32 s{sB}, s{sB}, 2
    s_add_u32 s{sB}, s{sB}, s{sT0}
    s_bfe_u32 s{sKG}, s2, 0x20001
    s_lshl_b32 s{sH}, s{sKG}, 3
    s_add_u32 s{sH}, s{sH}, s{sT1}
    s_and_b32 s{sRB}, s{sT1}, 1
    s_lshr_b32 s{sCB}, s{sT1}, 1
    s_lshl_b32 s{sT0}, s{sT0}, 1
    s_add_u32 s{sRW}, s{sT0}, s{sRB}
    s_add_u32 s{sROT}, s{sT0}, s{sT1}
    s_and_b32 s{sROT}, s{sROT}, 7
    s_lshl_b32 s{sW4K}, s{sWAVE}, 12
    s_lshl_b32 s{sW8K}, s{sWAVE}, 13
    """)
    if not cfg.rot:
        g(f"s_mov_b32 s{sROT}, 0\ns_mov_b32 s{sRW}, 0")
    g(f"""
    v_and_b32 v2, 15, v{vLANE}
    v_lshrrev_b32 v3, 4, v{vLANE}
    v_lshrrev_b32 v5, 3, v{vLANE}
    v_and_b32 v6, 7, v{vLANE}
    v_bfe_u32 v7, v{vLANE}, 2, 2
    v_xor_b32 v8, v6, v3
    v_lshlrev_b32 v8, 4, v8
    v_lshl_add_u32 v{vRO}, v5, 10, v8
    v_xor_b32 v8, 64, v{vRO}
    v_add_u32 v{vRO+1}, 7168, v8
    v_add_u32 v{vRO+2}, {2*7168}, v{vRO}
    v_add_u32 v{vRO+3}, {3*7168}, v8
    v_lshlrev_b32 v8, 2, v3
    v_xor_b32 v8, v2, v8
    v_lshlrev_b32 v9, 4, v8
    v_lshl_add_u32 v{vWO}, v3, 13, v9
    v_add_u32 v{vWO+1}, 31744, v{vWO}
    s_lshl_b32 s{sXS}, s{sB}, 18
    s_lshl_b32 s{sT0}, s{sWAVE}, 16
    s_add_u32 s{sXS}, s{sXS}, s{sT0}
    s_lshl_b32 s{sWS_}, s{sH}, 8
    s_add_u32 s{sWS_}, s{sWS_}, s{sT0}
    s_lshl_b32 s{sWL}, s{sWAVE}, 11
    s_lshl_b32 s{sXL}, s{sROT}, 19
    s_waitcnt lgkmcnt(0)
    """)
    srd(g, SWQ, 70, 71, 4 * K * K)
    srd(g, SX, 64, 65, 2 * K * K)

def setup_late(g, cfg):
    g(f"s_lshl_b32 s{sT0}, s{sB}, 5\ns_add_u32 s{sT0}, s{sT0}, s{sH}\ns_lshl_b32 s{sT1}, s{sT0}, 18")
    srd(g, SK, 66, 67, 256 * K, f"s{sT1}")
    srd(g, SV, 68, 69, 256 * K, f"s{sT1}")
    srd(g, SWO, 72, 73, 4 * K * K)
    srd(g, SWS, 78, 79, 128 * K * K)
    srd(g, SOUT, 74, 75, 2 * K * K)
    srd(g, SDBG, 76, 77, 256)
    g(f"""
    s_lshl_b32 s{sST}, s{sT0}, 16
    s_lshl_b32 s{sT1}, s{sWAVE}, 14
    s_add_u32 s{sST}, s{sST}, s{sT1}
    s_lshl_b32 s{sT0}, s{sT0}, 2
    s_add_u32 s{sT0}, s{sT0}, s{sWAVE}
    s_mul_i32 s{sT0}, s{sT0}, {FS}
    s_add_u32 s{sFO}, s{sT0}, {WS_FLAGS}
    s_add_u32 s{sOWN}, s{sKG}, s{sCB}
    s_and_b32 s{sOWN}, s{sOWN}, 3
    s_lshl_b32 s{sT0}, s{sB}, 1
    s_add_u32 s{sT0}, s{sT0}, s{sRB}
    s_lshl_b32 s{sT0}, s{sT0}, 2
    s_add_u32 s{sT0}, s{sT0}, s{sCB}
    s_mul_i32 s{sPB}, s{sT0}, {16 * 12288}
    s_mul_i32 s{sT1}, s{sWAVE}, 12288
    s_add_u32 s{sPB}, s{sPB}, s{sT1}
    s_add_u32 s{sPB}, s{sPB}, {WS_PART}
    s_mul_i32 s{sT1}, s{sKG}, {4 * 12288}
    s_add_u32 s{sT1}, s{sT1}, s{sPB}
    s_add_u32 s{SZ}, s{SWS}, s{sT1}
    s_addc_u32 s{SZ+1}, s{SWS+1}, 0
    s_mov_b32 s{SZ+2}, 12288
    s_mov_b32 s{SZ+3}, 0x20000
    v_lshlrev_b32 v4, 4, v{vLANE}
    v_mov_b32 v11, 0
    """)
    for i in range(4): g(f"v_mov_b32 v{vSEN+i}, -1")
    g("s_mov_b64 exec, 1")
    g.vmem(f"buffer_store_dword v11, v11, s[{SWS}:{SWS+3}], s{sFO} offen sc1", "fz")
    if cfg.tlb:
        g(f"s_lshl_b32 s{sT2}, s{sB}, 18\ns_lshl_b32 s{sT3}, s{sKG}, 20")
        g.vmem(f"buffer_load_dword v{vT+4}, v11, s[{SK}:{SK+3}], 0 offen nt", "tlb")
        g.vmem(f"buffer_load_dword v{vT+5}, v11, s[{SV}:{SV+3}], 0 offen nt", "tlb")
        g.vmem(f"buffer_load_dword v{vT+6}, v11, s[{SOUT}:{SOUT+3}], s{sT2} offen nt", "tlb")
        g.vmem(f"buffer_load_dword v{vT+7}, v11, s[{SWO}:{SWO+3}], s{sT3} offen nt", "tlb")
    g("s_mov_b64 exec, -1")
    g(f"""
    v_xor_b32 v8, v2, v3
    v_lshlrev_b32 v8, 4, v8
    v_lshl_add_u32 v{vOA}, v3, 8, v8
    v_xor_b32 v{vOA+1}, 64, v{vOA}
    v_xor_b32 v{vOA+2}, 0x80, v{vOA}
    v_xor_b32 v{vOA+3}, 0xc0, v{vOA}
    v_lshlrev_b32 v8, 1, v3
    v_xor_b32 v8, v2, v8
    v_lshlrev_b32 v8, 4, v8
    v_lshl_add_u32 v{vOB}, v3, 8, v8
    v_xor_b32 v{vOB+1}, 0x80, v{vOB}
    """)
    g(f"""
    v_and_b32 v12, 3, v{vLANE}
    v_lshl_add_u32 v13, v3, 3, v7
    v_lshlrev_b32 v13, 8, v13
    v_lshl_add_u32 v13, v7, 6, v13
    v_lshl_add_u32 v13, v12, 4, v13
    v_add_u32 v{vVA}, {WB[0]}, v13
    v_add_u32 v{vVA+4}, {WB[1]}, v13
    """)
    for s in range(1, 4):
        g(f"v_xor_b32 v{vVA+s}, {s<<6}, v{vVA}\nv_xor_b32 v{vVA+4+s}, {s<<6}, v{vVA+4}")
    g(f"""
    v_lshrrev_b32 v13, 1, v2
    v_xor_b32 v13, v13, v3
    v_lshlrev_b32 v13, 4, v13
    v_lshl_add_u32 v13, v2, 7, v13
    v_add_u32 v13, s{sW8K}, v13
    v_add_u32 v{vKA}, {XSL[0]}, v13
    v_add_u32 v{vKA+2}, {XSL[1]}, v13
    v_xor_b32 v{vKA+1}, 64, v{vKA}
    v_xor_b32 v{vKA+3}, 64, v{vKA+2}
    s_mov_b32 s{sTHR}, {f32bits(cfg.thr):#x}
    s_mov_b32 s{sSC}, {f32bits(math.log2(math.e) / math.sqrt(128.0)):#x}
    s_mov_b32 s{sSC+1}, s{sSC}
    """)
    for i in range(4):
        g(f"v_mov_b32 v{vL+i}, 0\nv_mov_b32 v{vONE+i}, 0x3f803f80")

def code_touch(g, cfg, lo, hi, share=True):
    lab = g.newlabel("L_pc") if hasattr(g, "newlabel") else None
    g(f"""s_getpc_b64 s[{sPC}:{sPC+1}]
    {lab}:
    s_add_u32 s{sPC}, s{sPC}, {lo}-{lab}
    s_addc_u32 s{sPC+1}, s{sPC+1}, 0
    s_lshr_b32 s{sT2}, s2, 3
    s_lshl_b32 s{sT2}, s{sT2}, 2
    s_add_u32 s{sT2}, s{sT2}, s{sWAVE}
    v_lshlrev_b32 v10, 7, v{vLANE}
    v_add_u32 v10, s{sT2}, v10
    v_lshlrev_b32 v10, 7, v10
    v_cmp_gt_u32 vcc, {hi}-{lo}, v10
    s_and_saveexec_b64 s[86:87], vcc""")
    g.vmem(f"global_load_dword v{vT+3}, v10, s[{sPC}:{sPC+1}]", "ct")
    g("s_mov_b64 exec, -1")

def kaddr_items():
    r = Rec()
    r(f"""
    v_xor_b32 v10, v2, v3
    v_lshlrev_b32 v10, 4, v10
    v_lshl_add_u32 v10, v2, 8, v10
    v_add_u32 v{vKA}, {BASE["K"]}, v10
    """)
    for s in range(1, 4): r(f"v_xor_b32 v{vKA+s}, {s<<6}, v{vKA}")
    return r.items

def vaddr_items():
    r = Rec()
    r(f"""
    v_lshl_add_u32 v10, v3, 2, v7
    v_and_b32 v11, 7, v10
    v_lshlrev_b32 v10, 8, v10
    v_lshl_add_u32 v10, v11, 5, v10
    v_lshl_add_u32 v10, v12, 3, v10
    v_add_u32 v{vVA}, {BASE['V']}, v10
    """)
    for t in range(1, 8): r(f"v_xor_b32 v{vVA+t}, {t<<5}, v{vVA}")
    return r.items

def kv_group(g, cfg, kind, j):
    srdreg, vregs = (SK, [vOA + n for n in range(4)]) if kind == "K" else (SV, [vOB + n % 2 for n in range(4)])
    g(f"s_add_u32 m0, s{sW4K}, {TP[f'{kind}{j}']}\ns_add_u32 s{sT0}, s{sW4K}, {16384 * j}")
    dma_group(g, srdreg, vregs, sT0, f"{kind}{j}", " nt" if cfg.nt_kv else "")

def wo_dma(rec, tau):
    rec(f"s_add_u32 s{sT0}, s{sXS}, {tau * 65536}")
    rec(f"s_add_u32 m0, s{sW4K}, {TP[f'W{tau}']}")
    rec(f"s_and_b32 s{sT0}, s{sT0}, 0xfffff")
    dma_group(rec, SWO, [vOW + n for n in range(4)], sT0, f"W{tau}", " nt" if tau < Cfg.wnt else "")

def load(g, cfg, name):
    if name[0] == "x": x_dma(g, cfg, int(name[1]), "ab".index(name[2]))
    elif name[0] == "w": w_dma(g, cfg, int(name[1:]))
    elif name[0] == "W": wo_dma(g, int(name[1:]))
    elif name[0] == "z":
        g(f"s_movk_i32 s{sT0}, {int(name[1]) * 4096}")
        for k in range(4):
            g.vmem(f"buffer_store_dwordx4 v[{vSEN}:{vSEN+3}], v{vOL}, s[{SZ}:{SZ+3}], s{sT0} offen offset:{1024*k} {cfg.zfl.replace('_', ' ')}", name)
    else: kv_group(g, cfg, name[0], int(name[1:]))

BASE = {"K": 128 * K, "V": 128 * K}
def rebase_items(kind, pos):
    want = 128 * K if pos >= 128 * K else (0 if kind == "K" else 64 * K)
    r = Rec()
    if want != BASE[kind]:
        for i in (range(vKA, vKA + 4) if kind == "K" else range(vVA, vVA + 8)):
            r(f"v_add_u32 v{i}, {(want - BASE[kind]) & 0xffffffff:#x}, v{i}")
        BASE[kind] = want
    return r.items

def x_dma(g, cfg, c, grp):
    if grp == 0:
        g(f"s_add_u32 s{sT4}, s{sROT}, {c}\ns_and_b32 s{sT4}, s{sT4}, 7\ns_lshl_b32 s{sT4}, s{sT4}, 7")
    g(f"s_add_u32 m0, s{sW8K}, {XSL[c % 2] + grp * 4096}")
    g(f"s_add_u32 s{sT4}, s{sT4}, " + (f"s{sXS}" if grp == 0 else "32768"))
    dma_group(g, SX, [vRO + n for n in range(4)], sT4, f"x{c}")

def w_dma(g, cfg, k):
    g(f"s_add_u32 s{sT0}, s{sXL}, {k << 18}\ns_and_b32 s{sT0}, s{sT0}, 0x3fffff")
    g(f"s_add_u32 m0, s{sWL}, {WSL[k] * K}")
    g(f"s_add_u32 s{sT0}, s{sT0}, s{sWS_}")
    for n in range(2):
        g.vmem(f"buffer_load_dwordx4 v{vWO+n}, s[{SWQ}:{SWQ+3}], s{sT0} offen offset:{1024*n} lds", f"w{k}")

def kfrag_reads(i):
    off = TP[f"K{i//2}"] - BASE["K"] + (i % 2) * 8192
    assert 0 <= off < 65536 - 4096
    r = Rec()
    for s in range(4):
        for kt in range(2):
            r.ds(f"ds_read_b128 {ar(KF(kt,s),4)}, v{vKA+s} offset:{off + kt*4096}", f"kf{i}_{s}")
    return r.items

def vfrag_reads(i):
    off = TP[f"V{i//2}"] - BASE["V"] + (i % 2) * 8192
    assert 0 <= off < 65536 - 4096
    r = Rec()
    for t in range(8):
        for hf in range(2):
            r.ds(f"ds_read_b64_tr_b16 {ar(VF(t)+2*hf,2)}, v{vVA+t} offset:{off + hf*4096}", f"vf{i}")
    return r.items

QS = {
 "a": dict(xread=[-1, 0, 2, 3, 5, 6, 8, 9],
           d={-2: "w0 x0a x0b w1 w2 x1a x1b w3", -1: "K0 V0",
              0: "x2a x2b", 1: "w4 w5 x3a", 2: "x3b w6 w8", 3: "x4a x4b", 4: "w7 w9 x5a", 5: "x5b w10 w11", 6: "x6a x6b",
              7: "w12 w13 x7a", 8: "x7b w14 w15", 9: "K1 K2", 10: "V1", 12: "V2", 14: "K3", 16: "V3"}),
 "b": dict(xread=[-1, 0, 2, 3, 5, 6, 8, 9],
           d={-2: "w0 x0a x0b w1 w2 x1a x1b w3",
              0: "x2a x2b", 1: "w4 w5 x3a", 2: "x3b w6 w8", 3: "x4a x4b", 4: "w7 w9 x5a", 5: "x5b w10 w11", 6: "x6a x6b",
              7: "w12 w13 x7a", 8: "x7b w14 w15", 9: "K0 V0", 10: "K1", 12: "V1", 14: "K2", 16: "V2"}),
 "c": dict(xread=[-1, 0, 2, 3, 5, 6, 8, 9],
           d={-2: "w0 x0a x0b w1 w2 x1a x1b w3 w4 w5", -1: "K0 V0",
              0: "x2a x2b", 1: "w6 w7 x3a", 2: "x3b w8 w9", 3: "x4a x4b", 4: "w10 w11 x5a", 5: "x5b w12 w13", 6: "x6a x6b",
              7: "w14 w15 x7a", 8: "x7b", 9: "K1 K2", 10: "V1", 12: "V2", 13: "K3", 15: "V3"}),
}

def make_plan(cfg):
    ring5 = cfg.ring5
    for kind, lo, st in (("K", 0, 128 * K), ("V", 64 * K, 144 * K)):
        n = 0
        for j in range(16):
            if j == 0 or (ring5 and j == 5): TP[f"{kind}{j}"] = st
            else:
                TP[f"{kind}{j}"] = lo + 16 * K * (n % 4); n += 1
    pre = " ".join(QS[cfg.qs]["d"].values()).split()
    units = [f"{k}{j}" for j in range(16) for k in "KV" if f"{k}{j}" not in pre]
    def prev(name):
        kind, j = name[0], int(name[1:])
        c = [i for i in range(j) if TP[f"{kind}{i}"] == TP[name]]
        return c[-1] if c else None
    earliest = {u: (0 if prev(u) is None else 4 * (prev(u) + 1)) for u in units}
    latest = {u: 4 * (int(u[1:]) - (1 if u[0] == "K" else 0)) - cfg.margin for u in units}
    if cfg.bydl: units.sort(key=lambda u: (latest[u], earliest[u]))
    plan = {}
    pos = float(cfg.first)
    n = len(units)
    for i, u in enumerate(units):
        pos = max(pos, earliest[u])
        if pos >= cfg.knee:
            step = min((latest[v] - pos) / (k - i) for k, v in enumerate(units) if k > i) if i + 1 < n else 0
        else:
            step = cfg.fast
        pos = max(pos, earliest[u])
        b = int(pos)
        while b in plan: b += 1
        assert b <= latest[u] + 2, (u, b, latest[u])
        plan[b] = u
        pos += max(step, 1.0)
    wfree = {}
    st0 = 4 * ((5 if ring5 else 0) + 1)
    seq = []
    rounds = cfg.wrounds
    t = max(st0, cfg.wfirst)
    moves = {}
    for r in range(rounds + 1):
        for k in range(2):
            TP[f"W{2*r+k}"] = 128 * K + 16 * K * k
            seq.append((f"W{2*r+k}", t))
        if r < rounds:
            moves[t // 4 + 2] = r
            t = 4 * (t // 4 + 3)
    tau = 2 * rounds + 2
    for j in (12, 13, 14, 15):
        for kind in "KV":
            TP[f"W{tau}"] = TP[f"{kind}{j}"]
            if j < 15: seq.append((f"W{tau}", 4 * (j + 1)))
            tau += 1
    nloop = tau - 2
    k = 0
    while tau < 16:
        TP[f"W{tau}"] = TP[f"W{2*rounds + k}"]; tau += 1; k += 1
    for i in range(3): seq.append((f"z{i}", cfg.zfirst + cfg.zstep * i))
    for name, t in seq:
        b = t
        while b in plan: b += 1
        assert b < 63
        if name[0] == "W" and int(name[1:]) < 2 * rounds: assert b < 4 * (t // 4 + 1) + 2
        plan[b] = name
    return plan, moves, nloop

def qproj(g, cfg):
    qs = QS[cfg.qs]
    for name in qs["d"][-2].split(): load(g, cfg, name)
    if cfg.ctouch: code_touch(g, cfg, "L_code0", "L_end")
    g.label("L_code0")
    setup_late(g, cfg)
    for name in qs["d"].get(-1, "").split(): load(g, cfg, name)
    xlast = qs["xread"][7]
    free_after = {"K1": qs["xread"][6] + 1, "K2": qs["xread"][6] + 1, "V1": xlast + 1, "V2": xlast + 1, "K3": 9, "V3": 11, "K4": 13, "V4": 15}
    for k in range(8, 16): free_after[f"w{k}"] = k - 8
    for c in range(2, 8): free_after[f"x{c}a"] = free_after[f"x{c}b"] = qs["xread"][c - 2] + 1
    for h in range(-1, 16):
        g.comment(f"---- H({h})")
        if h + 1 <= 15:
            assert f"w{h+1}" not in " ".join(v for kk, v in qs["d"].items() if kk >= max(h, 0)).split()
            g.wait_vm(f"w{h+1}")
        else: g.wait_vm("K0", "K1", "V0")
        if h >= 0: g.wait_all(vm=False, lg=True)
        g("s_barrier")
        stamp(g, cfg, f"H{h}")
        xr = []
        if h in qs["xread"]:
            c = qs["xread"].index(h)
            assert h < 2 * c or c == 0
            assert f"x{c}b" not in " ".join(v for kk, v in qs["d"].items() if kk >= max(h, 0)).split()
            rd = Rec(); rd.wv(f"x{c}")
            for ks in range(2):
                for qt in range(4):
                    rd.ds(f"ds_read_b128 {rr(XF(c,ks,qt),4)}, v{vKA+2*(c%2)+ks} offset:{qt*2048}", f"xr{c}")
            xr = rd.items
        rd = Rec()
        if h + 1 <= 15:
            k = h + 1
            pos = WSL[k] * K
            st = int(pos >= WB[1]); base = WB[st]
            for s in range(4):
                for tb in range(2):
                    for hf in range(2):
                        rd.ds(f"ds_read_b64_tr_b16 {ar(WF(k%2, 2*s+tb)+2*hf,2)}, v{vVA+4*st+s} offset:{pos - base + hf*1024 + tb*8}")
        else:
            rd.items = kfrag_reads(0)
        wr = rd.items
        dm = Rec()
        for name in (qs["d"].get(h, "").split() if h >= 0 else []):
            assert h >= free_after.get(name, 0), name
            load(dm, cfg, name)
        misc = Rec()
        if h == 11: tail_setup(misc, cfg, 0)
        if h == 12: tail_setup(misc, cfg, 1)
        if h == 13: tail_setup(misc, cfg, 2)
        if h == 14:
            assert xlast < 14
            misc.items += kaddr_items()
        if h == 15: misc.items += vaddr_items()
        if h >= 8:
            for i in range(16 * (h - 8), 16 * (h - 7)): misc(f"v_accvgpr_write_b32 a{i}, 0")
        if h == -1:
            for it in wr + xr: play(g, it)
            continue
        c = h // 2
        order = [(qt, tile) for tile in range(8) for qt in range(4)]
        if h == 15: order = [(qt, tile) for qt in range(3, -1, -1) for tile in range(7, -1, -1)]
        mf = []
        for qt, tile in order:
            cc = "0" if h == 0 else vr(QACC(qt, tile), 4)
            mf.append(f"{MF} {vr(QACC(qt,tile),4)}, {ar(WF(h%2,tile),4)}, {rr(XF(c, h%2, qt),4)}, {cc}")
        emit_block(g, mf, [(dm.items, 0, 31, 40), (wr, 0, 20), (xr, 20, 27), (misc.items, 0, 31)], name=f"H{h}")
    return [n for n in qs["d"].get(16, "").split()]

def softmax_items(par):
    r = Rec()
    def T(i): return vT + (i % NT)
    pend = []
    for pi in range(16):
        qt, k = pi // 4, 2 * (pi % 4)
        r(f"v_exp_f32 v{T(2*pi)}, v{S(par,qt)+k}")
        if pi > 0:
            q0 = (pi - 1) // 4
            r(f"v_cvt_pk_bf16_f32 v{P(par,q0)+(pi-1)%4}, v{T(2*pi-2)}, v{T(2*pi-1)}")
        r(f"v_exp_f32 v{T(2*pi+1)}, v{S(par,qt)+k+1}")
        if pi % 4 == 1 and pi > 1:
            q0 = pi // 4 - 1
            r(f"{MF} {vr(LS(q0),4)}, {vr(vONE,4)}, {vr(P(par,q0),4)}, 0")
    r.atom(f"s_nop 0\nv_cvt_pk_bf16_f32 v{P(par,3)+3}, v{T(30)}, v{T(31)}")
    r.atom(f"s_nop 1\n{MF} {vr(LS(3),4)}, {vr(vONE,4)}, {vr(P(par,3),4)}, 0")
    return r.items

def check_items(site):
    r = Rec()
    r(f"v_add_f32 v{vCK}, v{LS(0)}, v{LS(1)}")
    r(f"v_add_f32 v{vCK}, v{vCK}, v{LS(2)}")
    a = r.items; r = Rec()
    r(f"v_add_f32 v{vCK}, v{vCK}, v{LS(3)}")
    r(f"v_cmp_nge_f32 vcc, s{sTHR}, v{vCK}")
    r.atom(f"s_cbranch_vccnz L_fb_{site}\nL_fbret_{site}:")
    b = r.items; r = Rec()
    for qt in range(4): r(f"v_add_f32 v{vL+qt}, v{vL+qt}, v{LS(qt)}")
    return a, b, r.items

def qk_mfmas(cfg, par, first_c=None):
    mf = []
    for s in range(4):
        order = [(kt, qt) for qt in range(4) for kt in range(2)] if (cfg.qk_b or s == 3) else [(kt, qt) for kt in range(2) for qt in range(4)]
        for kt, qt in order:
            d = vr(S(par, qt) + 4 * kt, 4)
            c = d if s else (first_c if first_c is not None else vr(NEGM(qt), 4))
            mf.append(f"{MF} {d}, {ar(KF(kt,s),4)}, {vr(Q(qt,s),4)}, {c}")
    return mf

def pv_mfmas(cfg, par, border=None):
    border = cfg.pv_b if border is None else border
    order = [(t, qt) for qt in range(4) for t in range(8)] if border else [(t, qt) for t in range(8) for qt in range(4)]
    return [f"{MF} {ar(O(qt,t),4)}, {ar(VF(t),4)}, {vr(P(par,qt),4)}, {ar(O(qt,t),4)}" for t, qt in order]

def rowmax4(g, par, dst, tmp):
    for qt in range(4):
        s = S(par, qt)
        g(f"v_max3_f32 v{dst+qt}, v{s}, v{s+1}, v{s+2}")
        g(f"v_max3_f32 v{tmp+qt}, v{s+3}, v{s+4}, v{s+5}")
    for qt in range(4):
        s = S(par, qt)
        g(f"v_max3_f32 v{dst+qt}, v{dst+qt}, v{s+6}, v{s+7}")
    for qt in range(4): g(f"v_max_f32 v{dst+qt}, v{dst+qt}, v{tmp+qt}")
    for op in ("v_permlane16_swap_b32", "v_permlane32_swap_b32"):
        for qt in range(4): g(f"v_mov_b32 v{tmp+qt}, v{dst+qt}")
        g("s_nop 1")
        for qt in range(4): g(f"{op} v{dst+qt}, v{tmp+qt}")
        for qt in range(4): g(f"v_max_f32 v{dst+qt}, v{dst+qt}, v{tmp+qt}")

def attention(g, cfg, late, plan, moves):
    SP = cfg.sm_split
    stamp(g, cfg, "qdone", wait=True)
    lr = Rec()
    for name in late: load(lr, cfg, name)
    lr = lr.items
    for p in range(63, -1, -1):
        src = 128 + 2 * p
        if p % 6 == 0 and lr:
            while lr[0][0] != "v": play(g, lr.pop(0))
            play(g, lr.pop(0))
        g(f"v_pk_mul_f32 v[{src}:{src+1}], v[{src}:{src+1}], s[{sSC}:{sSC+1}]")
        if p < 63:
            g(f"v_cvt_pk_bf16_f32 v{192+p+1}, v{src+2}, v{src+3}")
    g(f"v_cvt_pk_bf16_f32 v192, v128, v129\ns_nop 0")
    if cfg.qdump:
        g(f"s_add_u32 s{sT0}, s{sST}, {WS_QDUMP}\nv_lshlrev_b32 v10, 4, v{vLANE}")
        for f in range(16):
            if f % 4 == 0 and f: g(f"s_add_u32 s{sT0}, s{sT0}, 4096")
            g(f"buffer_store_dwordx4 v[{192+4*f}:{195+4*f}], v10, s[{SWS}:{SWS+3}], s{sT0} offen offset:{1024*(f%4)}")
        g("s_waitcnt vmcnt(0)")
    def side(b):
        r = Rec()
        if b in plan: load(r, cfg, plan[b])
        return r.items
    g.wait_all(vm=False, lg=True)
    stamp(g, cfg, "qconv")
    kr = kfrag_reads(1)
    emit_block(g, qk_mfmas(cfg, 0, first_c="0"), [(side(0), 0, 28, 40)] + [(kr[2*i:2*i+2], 8*i+7, min(31, 8*i+8)) for i in range(4)])
    g("s_nop 5")
    rowmax4(g, 0, vT, vT + 4)
    for qt in range(4):
        for k in range(8): g(f"v_sub_f32 v{S(0,qt)+k}, v{S(0,qt)+k}, v{vT+qt}")
        for k in range(4): g(f"v_sub_f32 v{NEGM(qt)+k}, 0, v{vT+qt}")
    pend_l = []
    zdone = max(b for b, n in plan.items() if n[0] == "z") // 4 + 2
    for i in range(32):
        par = i % 2
        j = i // 2
        sm = softmax_items(par)
        ck = check_items(i)
        if i == 0:
            for it in sm[:SP]: play(g, it)
            g.wait_all(vm=False, lg=True)
            rb = rebase_items("K", TP["K1"])
            emit_block(g, qk_mfmas(cfg, 1), [(vfrag_reads(0), 0, 26), (sm[SP:], 0, 25), (side(1), 0, 31, 40), (ck[0], 26, 27), (rb, 20, 29), (ck[1], 30, 31)], name="w0")
            pend_l = ck[2]
            continue
        extra = []
        if par == 0:
            need = [f"K{j+1}", f"V{j}"]
            if j in moves: need += [f"W{2*moves[j]}", f"W{2*moves[j]+1}"]
            if j == zdone: need += ["z0", "z1", "z2"]
            g.wait_vm(*need)
            g.wait_all(vm=False, lg=True)
            g("s_barrier")
            stamp(g, cfg, f"it{j-1}")
            if j == zdone:
                r = Rec(); r.atom(f"s_cmp_eq_u32 s{sWAVE}, 2\ns_cbranch_scc1 L_count\nL_countret:")
                extra.append((r.items, 40, 41))
        else:
            g.wait_all(vm=False, lg=True)
        if j in moves:
            its = []
            for st in range(4 * moves[j] + 2 * par, 4 * moves[j] + 2 * par + 2): its += wo_read(st)
            extra.append((its, 2, 56))
        if i == 31:
            mf = pv_mfmas(cfg, par ^ 1)
            emit_block(g, mf, [(pend_l, 0, 2), (sm[:cfg.sp31], cfg.lead, 31), (side(2 * i), 0, 31, 40)], name="w31")
            return sm[cfg.sp31:], ck
        rbv = rebase_items("V", TP[f"V{j}"])
        kr = kfrag_reads(i + 1)
        vrd = vfrag_reads(i)
        rbk = rebase_items("K", TP[f"K{(i+2)//2}"]) if i + 2 <= 31 else []
        mf = pv_mfmas(cfg, par ^ 1) + qk_mfmas(cfg, par ^ 1)
        wk = [([("wl", (f"kf{i+1}_3",), None)], 31, 31)]
        emit_block(g, mf, [(pend_l, 0, 2), (kr, 0, 24), (rbv, 3, 30), (sm, cfg.lead, 57), (side(2 * i), 1, 31, 40), (side(2 * i + 1), 32, 63, 40),
                           (vrd, 32, 58), (rbk, 32, 61), (ck[0], 58, 59), (ck[1], 62, 63)] + wk + extra, name=f"w{i}")
        pend_l = ck[2]

HOMES = [448 + 8 * i for i in range(8)] + [192 + 8 * i for i in range(8)] + [384 + 8 * i for i in range(8)] + [256 + 8 * i for i in range(8)]
def WOF(st, nt): return HOMES[st] + 4 * nt
def wo_read(st):
    pos = TP[f"W{st//2}"] + (st % 2) * 8192
    a = pos // (64 * K)
    r = Rec()
    for nt in range(2):
        for hf in range(2):
            r.ds(f"ds_read_b64_tr_b16 {rr(WOF(st,nt)+2*hf,2)}, v{vWR+a} offset:{pos - a*64*K + hf*4096 + nt*8}", f"wr{st}")
    return r.items

def tail_setup(g, cfg, part):
    if part == 0:
        g.atom(f"""s_lshl_b32 s{sT2}, s{sKG}, 20
        s_lshl_b32 s{sT1}, s{sCB}, 8
        s_add_u32 s{sT2}, s{sT2}, s{sT1}""")
        g.atom(f"s_add_u32 s{SWO}, s{SWO}, s{sT2}\ns_addc_u32 s{SWO+1}, s{SWO+1}, 0")
        g(f"s_sub_u32 s{SWO+2}, {K*K}, s{sT1}")
        g(f"v_lshl_add_u32 v{vOW}, v3, 10, v9")
        for n in range(1, 4): g(f"v_add_u32 v{vOW+n}, {3072*n}, v{vOW}")
        g(f"""
        s_lshl_b32 s{sXS}, s{sRW}, 17
        s_lshl_b32 s{sT1}, s{sWAVE}, 14
        s_add_u32 s{sXS}, s{sXS}, s{sT1}
        v_lshl_add_u32 v10, v3, 2, v7
        v_lshlrev_b32 v10, 8, v10
        v_xor_b32 v11, s{sWAVE}, v7
        v_lshl_add_u32 v10, v11, 6, v10
        v_lshl_add_u32 v{vWR}, v12, 4, v10
        v_add_u32 v{vWR+1}, {64*K}, v{vWR}
        v_add_u32 v{vWR+2}, {128*K}, v{vWR}
        v_mov_b32 v{vZ}, 0
        """)
    elif part == 1:
        g(f"""
        s_add_u32 s{sT2}, s{sRW}, s{sWAVE}
        v_and_b32 v10, 1, v{vLANE}
        v_lshl_add_u32 v10, v10, 2, s{sT2}
        v_and_b32 v10, 7, v10
        v_bfe_u32 v11, v{vLANE}, 1, 1
        v_lshl_add_u32 v10, v10, 2, v11
        v_mul_u32_u24 v{vFA}, {FS}, v10
        s_lshl_b32 s{sT2}, s{sB}, 2
        s_add_u32 s{sT2}, s{sT2}, s{sKG}
        s_lshl_b32 s{sOB}, s{sT2}, 19
        s_lshl_b32 s{sT1}, s{sRB}, 15
        s_add_u32 s{sOB}, s{sOB}, s{sT1}
        s_lshl_b32 s{sT2}, s{sT2}, 5
        s_lshl_b32 s{sT1}, s{sRB}, 1
        s_add_u32 s{sT2}, s{sT2}, s{sT1}
        s_mul_i32 s{sT2}, s{sT2}, {FS}
        s_add_u32 s{sFC1}, s{sT2}, {WS_FLAGS}
        """)
    else:
        g(f"""
        s_lshl_b32 s{sCN}, s{sB}, 5
        s_mov_b32 s{sRDY}, 0
        s_mov_b32 s{sSPIN}, 0
        s_lshl_b32 s{sOUTB}, s{sB}, 18
        s_lshl_b32 s{sT2}, s{sRB}, 17
        s_add_u32 s{sOUTB}, s{sOUTB}, s{sT2}
        s_lshl_b32 s{sT2}, s{sOWN}, 15
        s_add_u32 s{sOUTB}, s{sOUTB}, s{sT2}
        s_lshl_b32 s{sT2}, s{sCB}, 8
        s_add_u32 s{sOUTB}, s{sOUTB}, s{sT2}
        s_lshl_b32 s{sT2}, s{sWAVE}, 6
        s_add_u32 s{sOUTB}, s{sOUTB}, s{sT2}
        """)

def stubs(g, cfg):
    g.label("L_count")
    g(f"""
    v_mov_b32 v11, 1
    s_mov_b64 exec, 1
    buffer_atomic_add v11, v{vZ}, s[{SDBG}:{SDBG+3}], s{sCN} offen sc1
    s_mov_b64 exec, -1
    s_branch L_countret
    """)
    for i in range(32):
        g.label(f"L_fb_{i}")
        g(f"s_call_b64 s[86:87], L_rescale{i % 2}\ns_branch L_fbret_{i}")

def fallback(g, par):
    g.label(f"L_rescale{par}")
    g("s_nop 15\ns_nop 15")
    d, f = vT, vT + 4
    rowmax4(g, par, d, f)
    for qt in range(4):
        g(f"v_max_f32 v{d+qt}, 0, v{d+qt}")
        g(f"v_sub_f32 v{f+qt}, 0, v{d+qt}")
        g(f"v_exp_f32 v{f+qt}, v{f+qt}")
    for qt in range(4):
        for k in range(4): g(f"v_sub_f32 v{NEGM(qt)+k}, v{NEGM(qt)+k}, v{d+qt}")
        for k in range(8):
            g(f"v_sub_f32 v{S(par,qt)+k}, v{S(par,qt)+k}, v{d+qt}")
            g(f"v_sub_f32 v{S(par^1,qt)+k}, v{S(par^1,qt)+k}, v{d+qt}")
        g(f"v_mul_f32 v{vL+qt}, v{vL+qt}, v{f+qt}")
        for k in range(0, 32, 4):
            for i in range(4): g(f"v_accvgpr_read_b32 v{LS(0)+i}, a{32*qt+k+i}")
            for i in range(4): g(f"v_mul_f32 v{LS(0)+i}, v{LS(0)+i}, v{f+qt}")
            for i in range(4): g(f"v_accvgpr_write_b32 a{32*qt+k+i}, v{LS(0)+i}")
    for it in softmax_items(par): play(g, it)
    g("s_nop 15")
    g("s_setpc_b64 s[86:87]")

def tail(g, cfg, smrest, cc, nloop):
    r0 = 4 * cfg.wrounds
    for it in vfrag_reads(31): play(g, it)
    for it in smrest: play(g, it)
    for it in cc[0]: play(g, it)
    g("s_nop 6")
    for it in cc[1] + cc[2]: play(g, it)
    inv = [20, 22, 24, 26]
    g.vmem(f"buffer_load_dword v{vFL}, v{vZ}, s[{SDBG}:{SDBG+3}], s{sCN} offen sc1", "cnt")
    g.wait_all(vm=False, lg=True)
    for qt in range(4): g(f"v_rcp_f32 v{inv[qt]}, v{vL+qt}")
    stamp(g, cfg, "attn_end")
    def norm(f):
        r = Rec()
        qt, s = f // 4, f % 4
        src = O(qt, 2 * s)
        tmp = 128 + 8 * (f % 4)
        dst = 160 + 4 * (f % 8)
        for i in range(8): r(f"v_accvgpr_read_b32 v{tmp+i}, a{src+i}")
        if f < cfg.npk:
            for i in range(8): r(f"v_mul_f32 v{tmp+i}, v{tmp+i}, v{inv[qt]}")
        else:
            for i in range(0, 8, 2): r(f"v_pk_mul_f32 v[{tmp+i}:{tmp+i+1}], v[{tmp+i}:{tmp+i+1}], v[{inv[qt]}:{inv[qt]+1}] op_sel_hi:[1,0]")
        for i in range(0, 8, 2): r(f"v_cvt_pk_bf16_f32 v{dst+i//2}, v{tmp+i}, v{tmp+i+1}")
        if f % 4 == 0 and f: r(f"s_add_u32 s{sST}, s{sST}, 4096")
        r.vmem(f"buffer_store_dwordx4 v[{dst}:{dst+3}], v{vOL}, s[{SWS}:{SWS+3}], s{sST} offen offset:{1024*(f%4)} {cfg.ofl.replace('_', ' ')}", "ost")
        return r.items
    mf = pv_mfmas(cfg, 1, border=True)
    nm = [it for f in range(16) for it in norm(f)]
    k = 0
    for i, m in enumerate(mf):
        g(m)
        if i >= 9:
            for it in nm[k:k + 5]: play(g, it)
            k += 5
    for it in nm[k:]: play(g, it)
    stamp(g, cfg, "stored", wait=True)
    g.wait_vm(f"W{nloop-1}")
    g("s_barrier")
    rec = Rec(); wo_dma(rec, nloop); wo_dma(rec, nloop + 1)
    dd = rec.items
    rest = list(range(nloop + 2, 16))
    nfirst = r0 + 2 * len(rest)
    for st in range(r0, 2 * nloop):
        for it in wo_read(st): play(g, it)
        if st == nfirst - 1:
            for it in dd: play(g, it)
            g.wait_lg(f"wr{st}")
            g("s_barrier")
            rec = Rec()
            for tau in rest: wo_dma(rec, tau)
            dd = rec.items
        for _ in range(2 if st < nfirst else 1):
            while dd and dd[0][0] != "v": play(g, dd.pop(0))
            if dd: play(g, dd.pop(0))
    for it in dd: play(g, it)
    g.wait_vm("ost")
    stamp(g, cfg, "ost_done", wait=True)
    g(f"v_mov_b32 v11, 1\ns_mov_b64 exec, 1")
    g.vmem(f"buffer_store_dword v11, v{vZ}, s[{SWS}:{SWS+3}], s{sFO} offen sc1", "flag")
    g("s_mov_b64 exec, -1")
    g.label("L_cnt")
    g(f"v_readfirstlane_b32 s{sT1}, v{vFL}\ns_cmp_ge_u32 s{sT1}, 32\ns_cbranch_scc0 L_cntspin")
    g.label("L_cntok")
    g.wait_vm("W15")
    g("s_barrier")
    for st in range(2 * nloop, 32):
        for it in wo_read(st): play(g, it)
    g(f"v_add_u32 v{vWR+1}, {64*K}, v{vOL}\nv_add_u32 v{vWR+2}, {128*K}, v{vOL}\nv_mov_b32 v{vWR}, v{vOL}")
    g.wait_all(vm=False, lg=True)
    g("s_barrier")
    stamp(g, cfg, "wo_done")
    def o_dma(rec, u):
        p, half = u // 2, u % 2
        rec.atom(f"""s_add_u32 s{sT2}, s{sOWN}, {p + 1}
        s_and_b32 s{sT2}, s{sT2}, 3
        s_and_b32 s{sT3}, s{sT2}, 2
        s_add_u32 s{sT3}, s{sT3}, {half}
        s_bitcmp1_b32 s{sRDY}, s{sT3}
        s_cbranch_scc0 L_poll{u}
        L_ok{u}:""")
        if u == 0: stamp(g, cfg, "poll_ok", wait=True)
        rec.atom(f"""s_add_u32 s{sT4}, s{sRW}, s{sWAVE}
        s_add_u32 s{sT4}, s{sT4}, {4 * half}
        s_and_b32 s{sT4}, s{sT4}, 7
        s_lshl_b32 s{sT4}, s{sT4}, 16
        s_lshl_b32 s{sT2}, s{sT2}, 13
        s_add_u32 s{sT4}, s{sT4}, s{sT2}
        s_add_u32 s{sT4}, s{sT4}, s{sOB}""")
        for grp in range(2):
            rec(f"s_add_u32 m0, s{sW8K}, {(u % 5) * 32768 + grp * 4096}")
            rec(f"s_add_u32 s{sT4}, s{sT4}, {grp * 4096}")
            dma_group(rec, SWS, [vOL] * 4, sT4, f"o{u}", " sc1")
    class Direct:
        def __init__(s, g): s.g = g
        def __call__(s, x): s.g(x)
        def atom(s, x): s.g(x)
        def vmem(s, x, t): s.g.vmem(x, t)
    NBUF = 10
    BF = [64 + 4 * i for i in range(NBUF)]
    def ACC(p, qt2, nt): return 128 + 16 * (p % 2) + 8 * qt2 + 4 * nt
    frs = [(u, hl, s, qt2) for u in range(8) for hl in range(4) for s in range(4) for qt2 in range(2)]
    def b_read(idx):
        u, hl, s, qt2 = frs[idx]
        pos = (u % 5) * 32768 + hl * 8192 + qt2 * 4096 + s * 1024
        a = pos // (64 * K)
        return ("d", f"ds_read_b128 {vr(BF[idx % NBUF],4)}, v{vWR+a} offset:{pos - a*64*K}", f"b{idx}")
    o_dma(Direct(g), 0); o_dma(Direct(g), 1)
    AHEAD = NBUF - 2
    BARPOS = 32 - AHEAD
    g.wait_vm("o0")
    g("s_barrier")
    for idx in range(AHEAD): play(g, b_read(idx))
    g.wait_lg("b1")
    def pstore(p):
        r = Rec(); r(f"s_movk_i32 s{sT1}, {p * 4096}")
        for k in range(4):
            a = ACC(p, 0, 0) + 4 * k
            r.vmem(f"buffer_store_dwordx4 v[{a}:{a+3}], v{vOL}, s[{SZ}:{SZ+3}], s{sT1} offen offset:{1024*k} sc1", f"ps{p}")
        return r.items
    PL = [104 + 4 * i for i in range(6)] + [160 + 4 * i for i in range(6)]
    def pload(r, p):
        r(f"s_add_u32 s{sT0}, s{sKG}, {3 - p}\ns_and_b32 s{sT0}, s{sT0}, 3\ns_mul_i32 s{sT0}, s{sT0}, {4 * 12288}\ns_add_u32 s{sT0}, s{sT0}, s{sPB}\ns_add_u32 s{sT0}, s{sT0}, {p * 4096}")
        for k in range(4):
            q = PL[4 * p + k]
            r.vmem(f"buffer_load_dwordx4 v[{q}:{q+3}], v{vOL}, s[{SWS}:{SWS+3}], s{sT0} offen offset:{1024*k} sc1", f"pl{p}")
    for u in range(8):
        p = u // 2
        stamp(g, cfg, f"u{u}", wait=True)
        mf = []; streams = []
        for li in range(32):
            idx = 32 * u + li
            _, hl, s, qt2 = frs[idx]
            st = (4 * (u % 2) + hl) * 4 + s
            for nt in range(2):
                d = vr(ACC(p, qt2, nt), 4)
                mf.append(f"{MF} {d}, {rr(WOF(st,nt),4)}, {vr(BF[idx % NBUF],4)}, {'0' if st == 0 else d}")
            if idx + AHEAD < len(frs): streams.append(([b_read(idx + AHEAD)], 2 * li, 2 * li))
            if li % 2 == 1 and idx + 2 < len(frs): streams.append(([("wl", (f"b{idx+2}",), None)], 2 * li + 1, 2 * li + 1))
            if li == BARPOS - 1 and u < 7:
                streams.append(([("wv", (f"o{u+1}",), None), ("i", "s_barrier", None)], 2 * li + 1, 2 * li + 1))
        side = []
        if u % 2 == 0 and u >= 2: side += pstore(p - 1)
        if u + 2 < 8:
            r = Rec(); o_dma(r, u + 2); side += r.items
        if u == 6:
            r = Rec()
            r(f"v_lshlrev_b32 v5, 10, v2\nv_lshl_add_u32 v5, v3, 4, v5")
            pload(r, 0); side += r.items
        streams.append((side, 6, 62, 40))
        if u == 7:
            r = Rec(); pload(r, 1); streams.append((r.items, 2, 24, 40))
            r = Rec(); pload(r, 2); streams.append((r.items, cfg.pl2_at, 62, 40))
        emit_block(g, mf, streams, name=f"u{u}")
    stamp(g, cfg, "gemm_done", wait=True)
    g.label("L_pp")
    g("s_waitcnt vmcnt(0)")
    regs = [q + i for q in PL for i in range(4)]
    g(f"v_max3_u32 v10, v{regs[0]}, v{regs[1]}, v{regs[2]}\nv_max3_u32 v11, v{regs[3]}, v{regs[4]}, v{regs[5]}")
    for i in range(6, 46, 4):
        g(f"v_max3_u32 v10, v10, v{regs[i]}, v{regs[i+1]}\nv_max3_u32 v11, v11, v{regs[i+2]}, v{regs[i+3]}")
    g(f"v_max3_u32 v10, v10, v{regs[46]}, v{regs[47]}\nv_max_u32 v10, v10, v11")
    g("v_cmp_eq_u32 vcc, -1, v10\ns_cbranch_vccnz L_ppspin")
    g.label("L_pp_ok")
    g.vm = []
    stamp(g, cfg, "poll2_ok", wait=True)
    a = ACC(3, 0, 0)
    for i in range(16): g(f"v_add_f32 v{regs[i]}, v{regs[i]}, v{regs[16+i]}\nv_add_f32 v{a+i}, v{a+i}, v{regs[32+i]}")
    for i in range(16): g(f"v_add_f32 v{a+i}, v{a+i}, v{regs[i]}")
    for i in range(8): g(f"v_cvt_pk_bf16_f32 v{64+i}, v{a+2*i}, v{a+2*i+1}")
    global PPSPIN
    r = Rec()
    for p in range(3): pload(r, p)
    PPSPIN = [it[1] for it in r.items]
    g(f"s_add_u32 s{sT0}, s{sOUTB}, 16384")
    g(f"buffer_store_dwordx4 v[64:67], v5, s[{SOUT}:{SOUT+3}], s{sOUTB} offen")
    g(f"buffer_store_dwordx4 v[68:71], v5, s[{SOUT}:{SOUT+3}], s{sT0} offen")
    if cfg.diag:
        g("s_waitcnt vmcnt(0)")
        stamp(g, cfg, "end", wait=True)
        stamp(g, cfg, "x", wait=True, record=False)
        g(f"s_lshl_b32 s{sT0}, s2, 2\ns_add_u32 s{sT0}, s{sT0}, s{sWAVE}\ns_lshl_b32 s{sT0}, s{sT0}, 8\ns_add_u32 s{sT0}, s{sT0}, {WS_STAMP}")
        g(f"v_lshlrev_b32 v10, 2, v{vLANE}")
        g(f"buffer_store_dword v{vST}, v10, s[{SWS}:{SWS+3}], s{sT0} offen")
    g.label("L_end")
    g("s_endpgm")

def spins(g, cfg):
    g.label("L_cntspin")
    g(f"""
    s_add_u32 s{sSPIN}, s{sSPIN}, 1
    s_cmp_gt_u32 s{sSPIN}, {SPIN_MAX}
    s_cbranch_scc1 L_cntok
    s_sleep 2
    buffer_load_dword v{vFL}, v{vZ}, s[{SDBG}:{SDBG+3}], s{sCN} offen sc1
    s_waitcnt vmcnt(0)
    s_branch L_cnt
    """)
    g.label("L_ppspin")
    g(f"s_add_u32 s{sSPIN}, s{sSPIN}, 1\ns_cmp_gt_u32 s{sSPIN}, {SPIN_MAX}\ns_cbranch_scc1 L_pp_ok")
    for l in PPSPIN: g(l)
    g("s_branch L_pp")
    for u in range(8):
        g.label(f"L_poll{u}")
        g(f"""
        buffer_load_dword v{vFL}, v{vFA}, s[{SWS}:{SWS+3}], s{sFC1} offen sc1
        s_add_u32 s{sSPIN}, s{sSPIN}, 1
        s_waitcnt vmcnt(0)
        v_cmp_eq_u32 vcc, 1, v{vFL}
        s_cmp_gt_u32 s{sSPIN}, {SPIN_MAX}
        s_cbranch_scc1 L_ok{u}
        s_mov_b32 s{sRDY}, vcc_lo
        s_bitcmp1_b32 s{sRDY}, s{sT3}
        s_cbranch_scc1 L_ok{u}
        s_branch L_poll{u}
        """)

Cfg.npk = 6
Cfg.wnt = 2
Cfg.zfl = 'sc1'
Cfg.ofl = 'sc1'
Cfg.ctouch = True
Cfg.bydl = True
Cfg.ring5 = False
Cfg.margin = 5
Cfg.first = 0
Cfg.fast = 2.0
Cfg.knee = 12
Cfg.wrounds = 2
Cfg.wfirst = 12
Cfg.zfirst = 5
Cfg.zstep = 2
Cfg.sp31 = 30
Cfg.pl2_at = 36

def build(cfg):
    g = Gen()
    plan, moves, nloop = make_plan(cfg)
    print("plan:", " ".join(f"{b}:{plan[b]}" for b in sorted(plan)), "| moves", moves, "nloop", nloop)
    setup(g, cfg)
    late = qproj(g, cfg)
    smrest, ck = attention(g, cfg, late, plan, moves)
    tail(g, cfg, smrest, ck, nloop)
    stubs(g, cfg)
    spins(g, cfg)
    fallback(g, 0); fallback(g, 1)
    errs = check_hazards(g.lines, "lin")
    for e in errs: print("HAZARD", e, file=sys.stderr)
    src = (HEADER + (("; STAMPS " + " ".join(STAMPS) + "\n") if cfg.diag else "") + "; @launch grid=(256,1,1) block=(256,1,1) lds=163840\n"
        '.amdgcn_target "amdgcn-amd-amdhsa--gfx950"\n.text\n'
        f".globl {KNAME}\n.p2align 8\n.type {KNAME},@function\n{KNAME}:\n"
        + g.text() +
        '.section .rodata,"a"\n.p2align 6\n'
        f".amdhsa_kernel {KNAME}\n"
        "  .amdhsa_next_free_vgpr 512\n  .amdhsa_next_free_sgpr 102\n  .amdhsa_accum_offset 256\n"
        "  .amdhsa_group_segment_fixed_size 0\n  .amdhsa_kernarg_size 64\n  .amdhsa_user_sgpr_count 2\n"
        "  .amdhsa_user_sgpr_kernarg_segment_ptr 1\n  .amdhsa_system_sgpr_workgroup_id_x 1\n"
        ".end_amdhsa_kernel\n")
    return src, errs

if __name__ == "__main__":
    cfg = Cfg()
    out = sys.argv[1]
    for kv in sys.argv[2:]:
        k, v = kv.split("=")
        cur = getattr(cfg, k)
        setattr(Cfg, k, bool(eval(v)) if isinstance(cur, bool) else (v if isinstance(cur, str) else type(cur)(eval(v))))
    src, errs = build(cfg)
    assert not errs
    open(out, "w").write(src)
    print(" ".join(f"{n}:{c}" for n, c in REPORT))
    print(f"wrote {out}: {src.count(chr(10))} lines, {len(errs)} hazard findings")
```

```python
import sys, math, struct
from core import *
from sched import schedule, gap_report

KNAME = "standalone__mha_block_cached__near_ridge_kernel"
HEADER = """; Kernarg layout for this problem (64 bytes, ptrs only, base s[0:1]):
"""
K = 1024
XSL = [0, 64 * K]
WSL = [32, 40, 96, 104, 48, 56, 112, 120] * 2
WB = [32 * K, 96 * K]
TP = {}

sWAVE = 3
SX, SWQ, SK, SV, SWO, SWS, SOUT, SDBG, SA, SB = 4, 8, 12, 16, 20, 24, 28, 32, 36, 40
sSOFFA, sSOFFB, sLDSA, sDB, sJ, sKD, sVD, sSTEP = 44, 45, 46, 47, 48, 49, 50, 51
sB, sH, sKG, sRB, sCB, sRW = 52, 53, 54, 55, 56, 57
sT0, sT1, sT2, sT3 = 58, 59, 60, 61
sTHR, sC4K, sC4V = 62, 63, 80
sC16K, sSPIN, sOWN, sPB, sFO, sFC1, sFC2, sOUTB = 66, 67, 68, 69, 70, 76, 77, 78
sW4K = 81
sPC = 44
SZ = 72
sZO = 64
sXS, sXL = 82, 83
sSC = 84
sOB, sST = 88, 89
sSTAMP, sSTC = 90, 92
sROT, sT4, sWS_, sWL, sRDY, sCN, sW8K = 94, 95, 96, 97, 98, 99, 100

vLANE = 1
vKA = 16
vVA = 20
vOA = 32
vOB = 36
vOW = 40
vRO = 40
vL = 44
vCK, vST = 48, 49
vWO = 50
vT = 52
NT = 8
vONE = 60
vSEN = 28
vWR = 13
vOL, vFL, vFA, vZ = 4, 38, 39, 50
def P(par, qt): return 64 + 16 * par + 4 * qt
def NEGM(qt): return 96 + 4 * qt
def LS(qt): return 112 + 4 * qt
def S(par, qt): return 128 + 32 * par + 8 * qt
def Q(qt, s): return 192 + 16 * qt + 4 * s
def QACC(qt, tile): return 128 + 32 * qt + 4 * tile
def O(qt, t): return 32 * qt + 4 * t
def KF(kt, s): return 128 + 16 * kt + 4 * s
def VF(t): return 160 + 4 * t
def WF(st, tile): return 128 + 32 * st + 4 * tile
XH = [256, 288, 320, 352, 448, 480, 64, 96]
def XF(c, ks, qt): return XH[c] + 16 * ks + 4 * qt

WS_PART = 16 * K * K
WS_FLAGS = 28 * K * K
WS_STAMP = 32 * K * K
WS_QDUMP = 64 * K * K
FS = 128
SPIN_MAX = 400000
MF = "v_mfma_f32_16x16x32_bf16"
def f32bits(x): return struct.unpack("<I", struct.pack("<f", x))[0]

class Cfg:
    diag = 0
    qdump = False
    thr = 16384.0
    nt_kv = True
    rot = True
    tlb = True
    wotouch = True
    qs = "b"
    pv_b = True
    qk_b = False
    sm_split = 24
    lead = 2
    dloop = False
    zmode = "loop"

STAMPS = []
def stamp(g, cfg, name, first=False, rep=1, record=True, wait=False):
    if not cfg.diag:
        return
    if cfg.dloop and name not in ("start", "x", "blk", "end"):
        return
    if not cfg.dloop and name == "blk":
        return
    if record:
        STAMPS.extend([name] if rep == 1 else [f"{name}{i}" for i in range(rep)])
    if first:
        g(f"s_mov_b64 s[{sSTC}:{sSTC+1}], 1")
    else:
        if wait: g("s_waitcnt lgkmcnt(0)")
        g(f"s_mov_b64 exec, s[{sSTC}:{sSTC+1}]\nv_mov_b32 v{vST}, s{sSTAMP}\ns_mov_b64 exec, -1\ns_lshl_b64 s[{sSTC}:{sSTC+1}], s[{sSTC}:{sSTC+1}], 1")
    g(f"{'s_memrealtime' if cfg.diag == 1 else 's_memtime'} s[{sSTAMP}:{sSTAMP+1}]")

class Rec(Gen):
    def __init__(self):
        super().__init__(); self.items = []
    def __call__(self, s):
        for l in s.strip("\n").split("\n"):
            l = l.strip()
            if l: self.items.append(("i", l, None))
    def vmem(self, s, tag=None): self.items.append(("v", s, tag))
    def ds(self, s, tag=None): self.items.append(("d", s, tag))
    def atom(self, s): self.items.append(("i", s.strip(), None))
    def wv(self, *tags): self.items.append(("wv", tags, None))
    def wl(self, *tags): self.items.append(("wl", tags, None))

def play(g, it):
    k, s, tag = it
    if k == "i": g(s)
    elif k == "v": g.vmem(s, tag)
    elif k == "wv": g.wait_vm(*s)
    elif k == "wl": g.wait_lg(*s)
    else: g.ds(s, tag)

REPORT = []
SSTATE = {"since_dma": 99}
def emit_block(g, mfmas, streams, name=None, dma_gap=4):
    ss = []
    for t in streams:
        d = dict(items=t[0], first=t[1], last=t[2])
        if len(t) > 3: d["ahead"] = t[3]
        ss.append(d)
    gaps = schedule(len(mfmas), ss, dma_gap=dma_gap, state=SSTATE)
    if name: REPORT.append((name, gap_report(mfmas, gaps)))
    for m, gap in zip(mfmas, gaps):
        g(m)
        for it in gap:
            play(g, it)

def srd(g, d, lo, hi, size, off=None):
    if off is None:
        g(f"s_mov_b32 s{d}, s{lo}\ns_mov_b32 s{d+1}, s{hi}")
    else:
        g(f"s_add_u32 s{d}, s{lo}, {off}\ns_addc_u32 s{d+1}, s{hi}, 0")
    g(f"s_mov_b32 s{d+2}, {size}\ns_mov_b32 s{d+3}, 0x20000")

def dma_group(g, srdreg, vregs, soff, tag, fl=""):
    for n in range(4):
        g.vmem(f"buffer_load_dwordx4 v{vregs[n]}, s[{srdreg}:{srdreg+3}], s{soff} offen offset:{1024*n}{fl} lds", tag)

def setup(g, cfg):
    g(f"""
    s_cmp_ge_u32 s2, 256
    s_cbranch_scc1 L_end
    s_load_dwordx16 s[64:79], s[0:1], 0
    """)
    stamp(g, cfg, "start", first=True)
    g(f"""
    v_lshrrev_b32 v2, 6, v0
    v_and_b32 v{vLANE}, 63, v0
    v_readfirstlane_b32 s{sWAVE}, v2
    s_bfe_u32 s{sT0}, s2, 0x20003
    s_lshr_b32 s{sT1}, s2, 5
    s_and_b32 s{sB}, s2, 1
    s_lshl_b32 s{sB}, s{sB}, 2
    s_add_u32 s{sB}, s{sB}, s{sT0}
    s_bfe_u32 s{sKG}, s2, 0x20001
    s_lshl_b32 s{sH}, s{sKG}, 3
    s_add_u32 s{sH}, s{sH}, s{sT1}
    s_and_b32 s{sRB}, s{sT1}, 1
    s_lshr_b32 s{sCB}, s{sT1}, 1
    s_lshl_b32 s{sT0}, s{sT0}, 1
    s_add_u32 s{sRW}, s{sT0}, s{sRB}
    s_add_u32 s{sROT}, s{sT0}, s{sT1}
    s_and_b32 s{sROT}, s{sROT}, 7
    s_lshl_b32 s{sW4K}, s{sWAVE}, 12
    s_lshl_b32 s{sW8K}, s{sWAVE}, 13
    """)
    if not cfg.rot:
        g(f"s_mov_b32 s{sROT}, 0\ns_mov_b32 s{sRW}, 0")
    g(f"""
    v_and_b32 v2, 15, v{vLANE}
    v_lshrrev_b32 v3, 4, v{vLANE}
    v_lshrrev_b32 v5, 3, v{vLANE}
    v_and_b32 v6, 7, v{vLANE}
    v_bfe_u32 v7, v{vLANE}, 2, 2
    v_xor_b32 v8, v6, v3
    v_lshlrev_b32 v8, 4, v8
    v_lshl_add_u32 v{vRO}, v5, 10, v8
    v_xor_b32 v8, 64, v{vRO}
    v_add_u32 v{vRO+1}, 7168, v8
    v_add_u32 v{vRO+2}, {2*7168}, v{vRO}
    v_add_u32 v{vRO+3}, {3*7168}, v8
    v_lshlrev_b32 v8, 2, v3
    v_xor_b32 v8, v2, v8
    v_lshlrev_b32 v9, 4, v8
    v_lshl_add_u32 v{vWO}, v3, 13, v9
    v_add_u32 v{vWO+1}, 31744, v{vWO}
    s_lshl_b32 s{sXS}, s{sB}, 18
    s_lshl_b32 s{sT0}, s{sWAVE}, 16
    s_add_u32 s{sXS}, s{sXS}, s{sT0}
    s_lshl_b32 s{sWS_}, s{sH}, 8
    s_add_u32 s{sWS_}, s{sWS_}, s{sT0}
    s_lshl_b32 s{sWL}, s{sWAVE}, 11
    s_lshl_b32 s{sXL}, s{sROT}, 19
    s_waitcnt lgkmcnt(0)
    """)
    srd(g, SWQ, 70, 71, 4 * K * K)
    srd(g, SX, 64, 65, 2 * K * K)

def setup_late(g, cfg):
    g(f"s_lshl_b32 s{sT0}, s{sB}, 5\ns_add_u32 s{sT0}, s{sT0}, s{sH}\ns_lshl_b32 s{sT1}, s{sT0}, 18")
    srd(g, SK, 66, 67, 256 * K, f"s{sT1}")
    srd(g, SV, 68, 69, 256 * K, f"s{sT1}")
    srd(g, SWO, 72, 73, 4 * K * K)
    srd(g, SWS, 78, 79, 128 * K * K)
    srd(g, SOUT, 74, 75, 2 * K * K)
    srd(g, SDBG, 76, 77, 256)
    g(f"""
    s_lshl_b32 s{sST}, s{sT0}, 16
    s_lshl_b32 s{sT1}, s{sWAVE}, 14
    s_add_u32 s{sST}, s{sST}, s{sT1}
    s_lshl_b32 s{sT0}, s{sT0}, 2
    s_add_u32 s{sT0}, s{sT0}, s{sWAVE}
    s_mul_i32 s{sT0}, s{sT0}, {FS}
    s_add_u32 s{sFO}, s{sT0}, {WS_FLAGS}
    s_add_u32 s{sOWN}, s{sKG}, s{sCB}
    s_and_b32 s{sOWN}, s{sOWN}, 3
    s_lshl_b32 s{sT0}, s{sB}, 1
    s_add_u32 s{sT0}, s{sT0}, s{sRB}
    s_lshl_b32 s{sT0}, s{sT0}, 2
    s_add_u32 s{sT0}, s{sT0}, s{sCB}
    s_mul_i32 s{sPB}, s{sT0}, {16 * 12288}
    s_mul_i32 s{sT1}, s{sWAVE}, 12288
    s_add_u32 s{sPB}, s{sPB}, s{sT1}
    s_add_u32 s{sPB}, s{sPB}, {WS_PART}
    s_mul_i32 s{sT1}, s{sKG}, {4 * 12288}
    s_add_u32 s{sT1}, s{sT1}, s{sPB}
    s_add_u32 s{SZ}, s{SWS}, s{sT1}
    s_addc_u32 s{SZ+1}, s{SWS+1}, 0
    s_mov_b32 s{SZ+2}, 12288
    s_mov_b32 s{SZ+3}, 0x20000
    v_lshlrev_b32 v4, 4, v{vLANE}
    v_mov_b32 v11, 0
    """)
    for i in range(4): g(f"v_mov_b32 v{vSEN+i}, -1")
    g("s_mov_b64 exec, 1")
    g.vmem(f"buffer_store_dword v11, v11, s[{SWS}:{SWS+3}], s{sFO} offen sc1", "fz")
    if cfg.tlb:
        g(f"s_lshl_b32 s{sT2}, s{sB}, 18\ns_lshl_b32 s{sT3}, s{sKG}, 20")
        g.vmem(f"buffer_load_dword v{vT+4}, v11, s[{SK}:{SK+3}], 0 offen nt", "tlb")
        g.vmem(f"buffer_load_dword v{vT+5}, v11, s[{SV}:{SV+3}], 0 offen nt", "tlb")
        g.vmem(f"buffer_load_dword v{vT+6}, v11, s[{SOUT}:{SOUT+3}], s{sT2} offen nt", "tlb")
        g.vmem(f"buffer_load_dword v{vT+7}, v11, s[{SWO}:{SWO+3}], s{sT3} offen nt", "tlb")
    g("s_mov_b64 exec, -1")
    g(f"""
    v_xor_b32 v8, v2, v3
    v_lshlrev_b32 v8, 4, v8
    v_lshl_add_u32 v{vOA}, v3, 8, v8
    v_xor_b32 v{vOA+1}, 64, v{vOA}
    v_xor_b32 v{vOA+2}, 0x80, v{vOA}
    v_xor_b32 v{vOA+3}, 0xc0, v{vOA}
    v_lshlrev_b32 v8, 1, v3
    v_xor_b32 v8, v2, v8
    v_lshlrev_b32 v8, 4, v8
    v_lshl_add_u32 v{vOB}, v3, 8, v8
    v_xor_b32 v{vOB+1}, 0x80, v{vOB}
    """)
    g(f"""
    v_and_b32 v12, 3, v{vLANE}
    v_lshl_add_u32 v13, v3, 3, v7
    v_lshlrev_b32 v13, 8, v13
    v_lshl_add_u32 v13, v7, 6, v13
    v_lshl_add_u32 v13, v12, 4, v13
    v_add_u32 v{vVA}, {WB[0]}, v13
    v_add_u32 v{vVA+4}, {WB[1]}, v13
    """)
    for s in range(1, 4):
        g(f"v_xor_b32 v{vVA+s}, {s<<6}, v{vVA}\nv_xor_b32 v{vVA+4+s}, {s<<6}, v{vVA+4}")
    g(f"""
    v_lshrrev_b32 v13, 1, v2
    v_xor_b32 v13, v13, v3
    v_lshlrev_b32 v13, 4, v13
    v_lshl_add_u32 v13, v2, 7, v13
    v_add_u32 v13, s{sW8K}, v13
    v_add_u32 v{vKA}, {XSL[0]}, v13
    v_add_u32 v{vKA+2}, {XSL[1]}, v13
    v_xor_b32 v{vKA+1}, 64, v{vKA}
    v_xor_b32 v{vKA+3}, 64, v{vKA+2}
    s_mov_b32 s{sTHR}, {f32bits(cfg.thr):#x}
    s_mov_b32 s{sSC}, {f32bits(math.log2(math.e) / math.sqrt(128.0)):#x}
    s_mov_b32 s{sSC+1}, s{sSC}
    """)
    for i in range(4):
        g(f"v_mov_b32 v{vL+i}, 0\nv_mov_b32 v{vONE+i}, 0x3f803f80")

def code_touch(g, cfg, lo, hi, share=True):
    lab = g.newlabel("L_pc") if hasattr(g, "newlabel") else None
    g(f"""s_getpc_b64 s[{sPC}:{sPC+1}]
    {lab}:
    s_add_u32 s{sPC}, s{sPC}, {lo}-{lab}
    s_addc_u32 s{sPC+1}, s{sPC+1}, 0
    s_lshr_b32 s{sT2}, s2, 3
    s_lshl_b32 s{sT2}, s{sT2}, 2
    s_add_u32 s{sT2}, s{sT2}, s{sWAVE}
    v_lshlrev_b32 v10, 7, v{vLANE}
    v_add_u32 v10, s{sT2}, v10
    v_lshlrev_b32 v10, 7, v10
    v_cmp_gt_u32 vcc, {hi}-{lo}, v10
    s_and_saveexec_b64 s[86:87], vcc""")
    g.vmem(f"global_load_dword v{vT+3}, v10, s[{sPC}:{sPC+1}]", "ct")
    g("s_mov_b64 exec, -1")

def kaddr_items():
    r = Rec()
    r(f"""
    v_xor_b32 v10, v2, v3
    v_lshlrev_b32 v10, 4, v10
    v_lshl_add_u32 v10, v2, 8, v10
    v_add_u32 v{vKA}, {BASE["K"]}, v10
    """)
    for s in range(1, 4): r(f"v_xor_b32 v{vKA+s}, {s<<6}, v{vKA}")
    return r.items

def vaddr_items():
    r = Rec()
    r(f"""
    v_lshl_add_u32 v10, v3, 2, v7
    v_and_b32 v11, 7, v10
    v_lshlrev_b32 v10, 8, v10
    v_lshl_add_u32 v10, v11, 5, v10
    v_lshl_add_u32 v10, v12, 3, v10
    v_add_u32 v{vVA}, {BASE['V']}, v10
    """)
    for t in range(1, 8): r(f"v_xor_b32 v{vVA+t}, {t<<5}, v{vVA}")
    return r.items

def kv_group(g, cfg, kind, j):
    srdreg, vregs = (SK, [vOA + n for n in range(4)]) if kind == "K" else (SV, [vOB + n % 2 for n in range(4)])
    g(f"s_add_u32 m0, s{sW4K}, {TP[f'{kind}{j}']}\ns_add_u32 s{sT0}, s{sW4K}, {16384 * j}")
    dma_group(g, srdreg, vregs, sT0, f"{kind}{j}", " nt" if cfg.nt_kv else "")

def wo_dma(rec, tau):
    rec(f"s_add_u32 s{sT0}, s{sXS}, {tau * 65536}")
    rec(f"s_add_u32 m0, s{sW4K}, {TP[f'W{tau}']}")
    rec(f"s_and_b32 s{sT0}, s{sT0}, 0xfffff")
    dma_group(rec, SWO, [vOW + n for n in range(4)], sT0, f"W{tau}", " nt" if tau < Cfg.wnt else "")

def load(g, cfg, name):
    if name[0] == "x": x_dma(g, cfg, int(name[1]), "ab".index(name[2]))
    elif name[0] == "w": w_dma(g, cfg, int(name[1:]))
    elif name[0] == "W": wo_dma(g, int(name[1:]))
    elif name[0] == "z":
        g(f"s_movk_i32 s{sT0}, {int(name[1]) * 4096}")
        for k in range(4):
            g.vmem(f"buffer_store_dwordx4 v[{vSEN}:{vSEN+3}], v{vOL}, s[{SZ}:{SZ+3}], s{sT0} offen offset:{1024*k} {cfg.zfl.replace('_', ' ')}", name)
    else: kv_group(g, cfg, name[0], int(name[1:]))

BASE = {"K": 128 * K, "V": 128 * K}
def rebase_items(kind, pos):
    want = 128 * K if pos >= 128 * K else (0 if kind == "K" else 64 * K)
    r = Rec()
    if want != BASE[kind]:
        for i in (range(vKA, vKA + 4) if kind == "K" else range(vVA, vVA + 8)):
            r(f"v_add_u32 v{i}, {(want - BASE[kind]) & 0xffffffff:#x}, v{i}")
        BASE[kind] = want
    return r.items

def x_dma(g, cfg, c, grp):
    if grp == 0:
        g(f"s_add_u32 s{sT4}, s{sROT}, {c}\ns_and_b32 s{sT4}, s{sT4}, 7\ns_lshl_b32 s{sT4}, s{sT4}, 7")
    g(f"s_add_u32 m0, s{sW8K}, {XSL[c % 2] + grp * 4096}")
    g(f"s_add_u32 s{sT4}, s{sT4}, " + (f"s{sXS}" if grp == 0 else "32768"))
    dma_group(g, SX, [vRO + n for n in range(4)], sT4, f"x{c}")

def w_dma(g, cfg, k):
    g(f"s_add_u32 s{sT0}, s{sXL}, {k << 18}\ns_and_b32 s{sT0}, s{sT0}, 0x3fffff")
    g(f"s_add_u32 m0, s{sWL}, {WSL[k] * K}")
    g(f"s_add_u32 s{sT0}, s{sT0}, s{sWS_}")
    for n in range(2):
        g.vmem(f"buffer_load_dwordx4 v{vWO+n}, s[{SWQ}:{SWQ+3}], s{sT0} offen offset:{1024*n} lds", f"w{k}")

def kfrag_reads(i):
    off = TP[f"K{i//2}"] - BASE["K"] + (i % 2) * 8192
    assert 0 <= off < 65536 - 4096
    r = Rec()
    for s in range(4):
        for kt in range(2):
            r.ds(f"ds_read_b128 {ar(KF(kt,s),4)}, v{vKA+s} offset:{off + kt*4096}", f"kf{i}_{s}")
    return r.items

def vfrag_reads(i):
    off = TP[f"V{i//2}"] - BASE["V"] + (i % 2) * 8192
    assert 0 <= off < 65536 - 4096
    r = Rec()
    for t in range(8):
        for hf in range(2):
            r.ds(f"ds_read_b64_tr_b16 {ar(VF(t)+2*hf,2)}, v{vVA+t} offset:{off + hf*4096}", f"vf{i}")
    return r.items

QS = {
 "a": dict(xread=[-1, 0, 2, 3, 5, 6, 8, 9],
           d={-2: "w0 x0a x0b w1 w2 x1a x1b w3", -1: "K0 V0",
              0: "x2a x2b", 1: "w4 w5 x3a", 2: "x3b w6 w8", 3: "x4a x4b", 4: "w7 w9 x5a", 5: "x5b w10 w11", 6: "x6a x6b",
              7: "w12 w13 x7a", 8: "x7b w14 w15", 9: "K1 K2", 10: "V1", 12: "V2", 14: "K3", 16: "V3"}),
 "b": dict(xread=[-1, 0, 2, 3, 5, 6, 8, 9],
           d={-2: "w0 x0a x0b w1 w2 x1a x1b w3",
              0: "x2a x2b", 1: "w4 w5 x3a", 2: "x3b w6 w8", 3: "x4a x4b", 4: "w7 w9 x5a", 5: "x5b w10 w11", 6: "x6a x6b",
              7: "w12 w13 x7a", 8: "x7b w14 w15", 9: "K0 V0", 10: "K1", 12: "V1", 14: "K2", 16: "V2"}),
 "d": dict(xread=[-1, 0, 2, 3, 5, 7, 9, 10],
           d={-2: "w0 x0a x0b w1 w2 x1a x1b w3",
              0: "x2a x2b", 1: "w4 w5 x3a", 2: "x3b w6 w7", 3: "x4a x4b", 4: "z0 x5a", 5: "x5b w8 w9", 6: "z1 x6a",
              7: "x6b w10 w11", 8: "x7a x7b", 9: "w12 w13 z2", 10: "w14 w15 K0", 11: "V0 K1", 13: "V1", 15: "K2", 16: "V2"}),
 "e": dict(xread=[-1, 0, 2, 3, 5, 6, 8, 9],
           d={-2: "w0 x0a x0b w1 w2 x1a x1b w3",
              0: "x2a x2b", 1: "w4 w5 x3a", 2: "x3b w6 w8", 3: "x4a x4b", 4: "w7 w9 x5a", 5: "x5b w10 w11", 6: "x6a x6b",
              7: "w12 w13 x7a", 8: "x7b w14 w15", 9: "z0 z1", 10: "z2 K0", 11: "V0 K1", 13: "V1", 15: "K2", 16: "V2"}),
 "c": dict(xread=[-1, 0, 2, 3, 5, 6, 8, 9],
           d={-2: "w0 x0a x0b w1 w2 x1a x1b w3 w4 w5", -1: "K0 V0",
              0: "x2a x2b", 1: "w6 w7 x3a", 2: "x3b w8 w9", 3: "x4a x4b", 4: "w10 w11 x5a", 5: "x5b w12 w13", 6: "x6a x6b",
              7: "w14 w15 x7a", 8: "x7b", 9: "K1 K2", 10: "V1", 12: "V2", 13: "K3", 15: "V3"}),
}

def make_plan(cfg):
    ring5 = cfg.ring5
    for kind, lo, st in (("K", 0, 128 * K), ("V", 64 * K, 144 * K)):
        n = 0
        for j in range(16):
            if j == 0 or (ring5 and j == 5): TP[f"{kind}{j}"] = st
            else:
                TP[f"{kind}{j}"] = lo + 16 * K * (n % 4); n += 1
    pre = " ".join(QS[cfg.qs]["d"].values()).split()
    units = [f"{k}{j}" for j in range(16) for k in "KV" if f"{k}{j}" not in pre]
    def prev(name):
        kind, j = name[0], int(name[1:])
        c = [i for i in range(j) if TP[f"{kind}{i}"] == TP[name]]
        return c[-1] if c else None
    earliest = {u: (0 if prev(u) is None else 4 * (prev(u) + 1)) for u in units}
    latest = {u: 4 * (int(u[1:]) - (1 if u[0] == "K" else 0)) - cfg.margin for u in units}
    if cfg.bydl: units.sort(key=lambda u: (latest[u], earliest[u]))
    plan = {}
    pos = float(cfg.first)
    n = len(units)
    for i, u in enumerate(units):
        pos = max(pos, earliest[u])
        if pos >= cfg.knee:
            step = min((latest[v] - pos) / (k - i) for k, v in enumerate(units) if k > i) if i + 1 < n else 0
        else:
            step = cfg.fast
        pos = max(pos, earliest[u])
        b = int(pos)
        while b in plan: b += 1
        assert b <= latest[u] + 2, (u, b, latest[u])
        plan[b] = u
        pos += max(step, 1.0)
    wfree = {}
    st0 = 4 * ((5 if ring5 else 0) + 1)
    seq = []
    rounds = cfg.wrounds
    t = max(st0, cfg.wfirst)
    moves = {}
    for r in range(rounds + 1):
        for k in range(2):
            TP[f"W{2*r+k}"] = 128 * K + 16 * K * k
            seq.append((f"W{2*r+k}", t))
        if r < rounds:
            moves[t // 4 + 2] = r
            t = 4 * (t // 4 + 3)
    tau = 2 * rounds + 2
    for j in (12, 13, 14, 15):
        for kind in "KV":
            TP[f"W{tau}"] = TP[f"{kind}{j}"]
            if j < 15: seq.append((f"W{tau}", 4 * (j + 1)))
            tau += 1
    nloop = tau - 2
    k = 0
    while tau < 16:
        TP[f"W{tau}"] = TP[f"W{2*rounds + k}"]; tau += 1; k += 1
    for i in range(3):
        if f"z{i}" not in pre and not cfg.noz: seq.append((f"z{i}", cfg.zfirst + cfg.zstep * i))
    for name, t in seq:
        b = t
        while b in plan: b += 1
        assert b < 63
        if name[0] == "W" and int(name[1:]) < 2 * rounds: assert b < 4 * (t // 4 + 1) + 2
        plan[b] = name
    return plan, moves, nloop

def qproj(g, cfg):
    qs = QS[cfg.qs]
    for name in qs["d"][-2].split(): load(g, cfg, name)
    if cfg.ctouch: code_touch(g, cfg, "L_code0", "L_end")
    g.label("L_code0")
    setup_late(g, cfg)
    for name in qs["d"].get(-1, "").split(): load(g, cfg, name)
    xlast = qs["xread"][7]
    free_after = {"K1": qs["xread"][6] + 1, "K2": qs["xread"][6] + 1, "V1": xlast + 1, "V2": xlast + 1, "K3": 9, "V3": 11, "K4": 13, "V4": 15}
    for k in range(8, 16): free_after[f"w{k}"] = k - 8
    for c in range(2, 8): free_after[f"x{c}a"] = free_after[f"x{c}b"] = qs["xread"][c - 2] + 1
    for h in range(-1, 16):
        g.comment(f"---- H({h})")
        if h + 1 <= 15:
            assert f"w{h+1}" not in " ".join(v for kk, v in qs["d"].items() if kk >= max(h, 0)).split()
            g.wait_vm(f"w{h+1}")
        else: g.wait_vm("K0", "K1", "V0")
        if h >= 0: g.wait_all(vm=False, lg=True)
        g("s_barrier")
        stamp(g, cfg, f"H{h}")
        xr = []
        if h in qs["xread"]:
            c = qs["xread"].index(h)
            assert h < 2 * c or c == 0
            assert f"x{c}b" not in " ".join(v for kk, v in qs["d"].items() if kk >= max(h, 0)).split()
            rd = Rec(); rd.wv(f"x{c}")
            for ks in range(2):
                for qt in range(4):
                    rd.ds(f"ds_read_b128 {rr(XF(c,ks,qt),4)}, v{vKA+2*(c%2)+ks} offset:{qt*2048}", f"xr{c}")
            xr = rd.items
        rd = Rec()
        if h + 1 <= 15:
            k = h + 1
            pos = WSL[k] * K
            st = int(pos >= WB[1]); base = WB[st]
            for s in range(4):
                for tb in range(2):
                    for hf in range(2):
                        rd.ds(f"ds_read_b64_tr_b16 {ar(WF(k%2, 2*s+tb)+2*hf,2)}, v{vVA+4*st+s} offset:{pos - base + hf*1024 + tb*8}")
        else:
            rd.items = kfrag_reads(0)
        wr = rd.items
        dm = Rec()
        for name in (qs["d"].get(h, "").split() if h >= 0 else []):
            assert h >= free_after.get(name, 0), name
            load(dm, cfg, name)
        misc = Rec()
        if h == 11: tail_setup(misc, cfg, 0)
        if h == 12: tail_setup(misc, cfg, 1)
        if h == 13: tail_setup(misc, cfg, 2)
        if h == 14:
            assert xlast < 14
            misc.items += kaddr_items()
        if h == 15: misc.items += vaddr_items()
        if h >= 8:
            for i in range(16 * (h - 8), 16 * (h - 7)): misc(f"v_accvgpr_write_b32 a{i}, 0")
        if h == -1:
            for it in wr + xr: play(g, it)
            continue
        c = h // 2
        order = [(qt, tile) for tile in range(8) for qt in range(4)]
        if h == 15: order = [(qt, tile) for qt in range(3, -1, -1) for tile in range(7, -1, -1)]
        mf = []
        for qt, tile in order:
            cc = "0" if h == 0 else vr(QACC(qt, tile), 4)
            mf.append(f"{MF} {vr(QACC(qt,tile),4)}, {ar(WF(h%2,tile),4)}, {rr(XF(c, h%2, qt),4)}, {cc}")
        emit_block(g, mf, [(dm.items, 0, 31, 40), (wr, 0, 20), (xr, 20, 27), (misc.items, 0, 31)], name=f"H{h}")
    return [n for n in qs["d"].get(16, "").split()]

def softmax_items(par):
    r = Rec()
    def T(i): return vT + (i % NT)
    pend = []
    for pi in range(16):
        qt, k = pi // 4, 2 * (pi % 4)
        r(f"v_exp_f32 v{T(2*pi)}, v{S(par,qt)+k}")
        if pi > 0:
            q0 = (pi - 1) // 4
            r(f"v_cvt_pk_bf16_f32 v{P(par,q0)+(pi-1)%4}, v{T(2*pi-2)}, v{T(2*pi-1)}")
        r(f"v_exp_f32 v{T(2*pi+1)}, v{S(par,qt)+k+1}")
        if pi % 4 == 1 and pi > 1:
            q0 = pi // 4 - 1
            r(f"{MF} {vr(LS(q0),4)}, {vr(vONE,4)}, {vr(P(par,q0),4)}, 0")
    r.atom(f"s_nop 0\nv_cvt_pk_bf16_f32 v{P(par,3)+3}, v{T(30)}, v{T(31)}")
    r.atom(f"s_nop 1\n{MF} {vr(LS(3),4)}, {vr(vONE,4)}, {vr(P(par,3),4)}, 0")
    return r.items

def check_items(site):
    r = Rec()
    r(f"v_add_f32 v{vCK}, v{LS(0)}, v{LS(1)}")
    r(f"v_add_f32 v{vCK}, v{vCK}, v{LS(2)}")
    a = r.items; r = Rec()
    r(f"v_add_f32 v{vCK}, v{vCK}, v{LS(3)}")
    r(f"v_cmp_nge_f32 vcc, s{sTHR}, v{vCK}")
    r.atom(f"s_cbranch_vccnz L_fb_{site}\nL_fbret_{site}:")
    b = r.items; r = Rec()
    for qt in range(4): r(f"v_add_f32 v{vL+qt}, v{vL+qt}, v{LS(qt)}")
    return a, b, r.items

def qk_mfmas(cfg, par, first_c=None):
    mf = []
    for s in range(4):
        order = [(kt, qt) for qt in range(4) for kt in range(2)] if (cfg.qk_b or s == 3) else [(kt, qt) for kt in range(2) for qt in range(4)]
        for kt, qt in order:
            d = vr(S(par, qt) + 4 * kt, 4)
            c = d if s else (first_c if first_c is not None else vr(NEGM(qt), 4))
            mf.append(f"{MF} {d}, {ar(KF(kt,s),4)}, {vr(Q(qt,s),4)}, {c}")
    return mf

def pv_mfmas(cfg, par, border=None):
    border = cfg.pv_b if border is None else border
    order = [(t, qt) for qt in range(4) for t in range(8)] if border else [(t, qt) for t in range(8) for qt in range(4)]
    return [f"{MF} {ar(O(qt,t),4)}, {ar(VF(t),4)}, {vr(P(par,qt),4)}, {ar(O(qt,t),4)}" for t, qt in order]

def rowmax4(g, par, dst, tmp):
    for qt in range(4):
        s = S(par, qt)
        g(f"v_max3_f32 v{dst+qt}, v{s}, v{s+1}, v{s+2}")
        g(f"v_max3_f32 v{tmp+qt}, v{s+3}, v{s+4}, v{s+5}")
    for qt in range(4):
        s = S(par, qt)
        g(f"v_max3_f32 v{dst+qt}, v{dst+qt}, v{s+6}, v{s+7}")
    for qt in range(4): g(f"v_max_f32 v{dst+qt}, v{dst+qt}, v{tmp+qt}")
    for op in ("v_permlane16_swap_b32", "v_permlane32_swap_b32"):
        for qt in range(4): g(f"v_mov_b32 v{tmp+qt}, v{dst+qt}")
        g("s_nop 1")
        for qt in range(4): g(f"{op} v{dst+qt}, v{tmp+qt}")
        for qt in range(4): g(f"v_max_f32 v{dst+qt}, v{dst+qt}, v{tmp+qt}")

def attention(g, cfg, late, plan, moves):
    SP = cfg.sm_split
    stamp(g, cfg, "qdone", wait=True)
    lr = Rec()
    for name in late: load(lr, cfg, name)
    lr = lr.items
    for p in range(63, -1, -1):
        src = 128 + 2 * p
        if p % 6 == 0 and lr:
            while lr[0][0] != "v": play(g, lr.pop(0))
            play(g, lr.pop(0))
        g(f"v_pk_mul_f32 v[{src}:{src+1}], v[{src}:{src+1}], s[{sSC}:{sSC+1}]")
        if p < 63:
            g(f"v_cvt_pk_bf16_f32 v{192+p+1}, v{src+2}, v{src+3}")
    g(f"v_cvt_pk_bf16_f32 v192, v128, v129\ns_nop 0")
    if cfg.qdump:
        g(f"s_add_u32 s{sT0}, s{sST}, {WS_QDUMP}\nv_lshlrev_b32 v10, 4, v{vLANE}")
        for f in range(16):
            if f % 4 == 0 and f: g(f"s_add_u32 s{sT0}, s{sT0}, 4096")
            g(f"buffer_store_dwordx4 v[{192+4*f}:{195+4*f}], v10, s[{SWS}:{SWS+3}], s{sT0} offen offset:{1024*(f%4)}")
        g("s_waitcnt vmcnt(0)")
    def side(b):
        r = Rec()
        if b in plan: load(r, cfg, plan[b])
        return r.items
    g.wait_all(vm=False, lg=True)
    stamp(g, cfg, "qconv")
    kr = kfrag_reads(1)
    emit_block(g, qk_mfmas(cfg, 0, first_c="0"), [(side(0), 0, 28, 40)] + [(kr[2*i:2*i+2], 8*i+7, min(31, 8*i+8)) for i in range(4)])
    g("s_nop 5")
    rowmax4(g, 0, vT, vT + 4)
    for qt in range(4):
        for k in range(8): g(f"v_sub_f32 v{S(0,qt)+k}, v{S(0,qt)+k}, v{vT+qt}")
        for k in range(4): g(f"v_sub_f32 v{NEGM(qt)+k}, 0, v{vT+qt}")
    pend_l = []
    zdone = max([b for b, n in plan.items() if n[0] == "z"] + [0]) // 4 + 2
    for i in range(32):
        par = i % 2
        j = i // 2
        sm = softmax_items(par)
        ck = check_items(i)
        if i == 0:
            for it in sm[:SP]: play(g, it)
            g.wait_all(vm=False, lg=True)
            rb = rebase_items("K", TP["K1"])
            emit_block(g, qk_mfmas(cfg, 1), [(vfrag_reads(0), 0, 26), (sm[SP:], 0, 25), (side(1), 0, 31, 40), (ck[0], 26, 27), (rb, 20, 29), (ck[1], 30, 31)], name="w0")
            pend_l = ck[2]
            continue
        extra = []
        if par == 0:
            need = [f"K{j+1}", f"V{j}"]
            if j in moves: need += [f"W{2*moves[j]}", f"W{2*moves[j]+1}"]
            if j == zdone: need += ["z0", "z1", "z2"]
            g.wait_vm(*need)
            g.wait_all(vm=False, lg=True)
            g("s_barrier")
            stamp(g, cfg, f"it{j-1}")
            if j == zdone:
                r = Rec(); r.atom(f"s_cmp_eq_u32 s{sWAVE}, 2\ns_cbranch_scc1 L_count\nL_countret:")
                extra.append((r.items, 40, 41))
        else:
            g.wait_all(vm=False, lg=True)
        if j in moves:
            its = []
            for st in range(4 * moves[j] + 2 * par, 4 * moves[j] + 2 * par + 2): its += wo_read(st)
            extra.append((its, 2, 56))
        if i == 31:
            mf = pv_mfmas(cfg, par ^ 1)
            emit_block(g, mf, [(pend_l, 0, 2), (sm[:cfg.sp31], cfg.lead, 31), (side(2 * i), 0, 31, 40)], name="w31")
            return sm[cfg.sp31:], ck
        rbv = rebase_items("V", TP[f"V{j}"])
        kr = kfrag_reads(i + 1)
        vrd = vfrag_reads(i)
        rbk = rebase_items("K", TP[f"K{(i+2)//2}"]) if i + 2 <= 31 else []
        mf = pv_mfmas(cfg, par ^ 1) + qk_mfmas(cfg, par ^ 1)
        wk = [([("wl", (f"kf{i+1}_3",), None)], 31, 31)]
        emit_block(g, mf, [(pend_l, 0, 2), (kr, 0, 24), (rbv, 3, 30), (sm, cfg.lead, 57), (side(2 * i), 1, 31, 40), (side(2 * i + 1), 32, 63, 40),
                           (vrd, 32, 58), (rbk, 32, 61), (ck[0], 58, 59), (ck[1], 62, 63)] + wk + extra, name=f"w{i}")
        pend_l = ck[2]

HOMES = [448 + 8 * i for i in range(8)] + [192 + 8 * i for i in range(8)] + [384 + 8 * i for i in range(8)] + [256 + 8 * i for i in range(8)]
def WOF(st, nt): return HOMES[st] + 4 * nt
def wo_read(st):
    pos = TP[f"W{st//2}"] + (st % 2) * 8192
    a = pos // (64 * K)
    r = Rec()
    for nt in range(2):
        for hf in range(2):
            r.ds(f"ds_read_b64_tr_b16 {rr(WOF(st,nt)+2*hf,2)}, v{vWR+a} offset:{pos - a*64*K + hf*4096 + nt*8}", f"wr{st}")
    return r.items

def tail_setup(g, cfg, part):
    if part == 0:
        g.atom(f"""s_lshl_b32 s{sT2}, s{sKG}, 20
        s_lshl_b32 s{sT1}, s{sCB}, 8
        s_add_u32 s{sT2}, s{sT2}, s{sT1}""")
        g.atom(f"s_add_u32 s{SWO}, s{SWO}, s{sT2}\ns_addc_u32 s{SWO+1}, s{SWO+1}, 0")
        g(f"s_sub_u32 s{SWO+2}, {K*K}, s{sT1}")
        g(f"v_lshl_add_u32 v{vOW}, v3, 10, v9")
        for n in range(1, 4): g(f"v_add_u32 v{vOW+n}, {3072*n}, v{vOW}")
        g(f"""
        s_lshl_b32 s{sXS}, s{sRW}, 17
        s_lshl_b32 s{sT1}, s{sWAVE}, 14
        s_add_u32 s{sXS}, s{sXS}, s{sT1}
        v_lshl_add_u32 v10, v3, 2, v7
        v_lshlrev_b32 v10, 8, v10
        v_xor_b32 v11, s{sWAVE}, v7
        v_lshl_add_u32 v10, v11, 6, v10
        v_lshl_add_u32 v{vWR}, v12, 4, v10
        v_add_u32 v{vWR+1}, {64*K}, v{vWR}
        v_add_u32 v{vWR+2}, {128*K}, v{vWR}
        v_mov_b32 v{vZ}, 0
        """)
    elif part == 1:
        g(f"""
        s_add_u32 s{sT2}, s{sRW}, s{sWAVE}
        v_and_b32 v10, 1, v{vLANE}
        v_lshl_add_u32 v10, v10, 2, s{sT2}
        v_and_b32 v10, 7, v10
        v_bfe_u32 v11, v{vLANE}, 1, 1
        v_lshl_add_u32 v10, v10, 2, v11
        v_mul_u32_u24 v{vFA}, {FS}, v10
        s_lshl_b32 s{sT2}, s{sB}, 2
        s_add_u32 s{sT2}, s{sT2}, s{sKG}
        s_lshl_b32 s{sOB}, s{sT2}, 19
        s_lshl_b32 s{sT1}, s{sRB}, 15
        s_add_u32 s{sOB}, s{sOB}, s{sT1}
        s_lshl_b32 s{sT2}, s{sT2}, 5
        s_lshl_b32 s{sT1}, s{sRB}, 1
        s_add_u32 s{sT2}, s{sT2}, s{sT1}
        s_mul_i32 s{sT2}, s{sT2}, {FS}
        s_add_u32 s{sFC1}, s{sT2}, {WS_FLAGS}
        """)
    else:
        g(f"""
        s_lshl_b32 s{sCN}, s{sB}, 5
        s_mov_b32 s{sRDY}, 0
        s_mov_b32 s{sSPIN}, 0
        s_lshl_b32 s{sOUTB}, s{sB}, 18
        s_lshl_b32 s{sT2}, s{sRB}, 17
        s_add_u32 s{sOUTB}, s{sOUTB}, s{sT2}
        s_lshl_b32 s{sT2}, s{sOWN}, 15
        s_add_u32 s{sOUTB}, s{sOUTB}, s{sT2}
        s_lshl_b32 s{sT2}, s{sCB}, 8
        s_add_u32 s{sOUTB}, s{sOUTB}, s{sT2}
        s_lshl_b32 s{sT2}, s{sWAVE}, 6
        s_add_u32 s{sOUTB}, s{sOUTB}, s{sT2}
        """)

def stubs(g, cfg):
    g.label("L_count")
    g(f"""
    v_mov_b32 v11, 1
    s_mov_b64 exec, 1
    buffer_atomic_add v11, v{vZ}, s[{SDBG}:{SDBG+3}], s{sCN} offen sc1
    s_mov_b64 exec, -1
    s_branch L_countret
    """)
    for i in range(32):
        g.label(f"L_fb_{i}")
        g(f"s_call_b64 s[86:87], L_rescale{i % 2}\ns_branch L_fbret_{i}")

def fallback(g, par):
    g.label(f"L_rescale{par}")
    g("s_nop 15\ns_nop 15")
    d, f = vT, vT + 4
    rowmax4(g, par, d, f)
    for qt in range(4):
        g(f"v_max_f32 v{d+qt}, 0, v{d+qt}")
        g(f"v_sub_f32 v{f+qt}, 0, v{d+qt}")
        g(f"v_exp_f32 v{f+qt}, v{f+qt}")
    for qt in range(4):
        for k in range(4): g(f"v_sub_f32 v{NEGM(qt)+k}, v{NEGM(qt)+k}, v{d+qt}")
        for k in range(8):
            g(f"v_sub_f32 v{S(par,qt)+k}, v{S(par,qt)+k}, v{d+qt}")
            g(f"v_sub_f32 v{S(par^1,qt)+k}, v{S(par^1,qt)+k}, v{d+qt}")
        g(f"v_mul_f32 v{vL+qt}, v{vL+qt}, v{f+qt}")
        for k in range(0, 32, 4):
            for i in range(4): g(f"v_accvgpr_read_b32 v{LS(0)+i}, a{32*qt+k+i}")
            for i in range(4): g(f"v_mul_f32 v{LS(0)+i}, v{LS(0)+i}, v{f+qt}")
            for i in range(4): g(f"v_accvgpr_write_b32 a{32*qt+k+i}, v{LS(0)+i}")
    for it in softmax_items(par): play(g, it)
    g("s_nop 15")
    g("s_setpc_b64 s[86:87]")

def tail(g, cfg, smrest, cc, nloop):
    r0 = 4 * cfg.wrounds
    for it in vfrag_reads(31): play(g, it)
    for it in smrest: play(g, it)
    for it in cc[0]: play(g, it)
    g("s_nop 6")
    for it in cc[1] + cc[2]: play(g, it)
    inv = [20, 22, 24, 26]
    g.vmem(f"buffer_load_dword v{vFL}, v{vZ}, s[{SDBG}:{SDBG+3}], s{sCN} offen sc1", "cnt")
    g.wait_all(vm=False, lg=True)
    for qt in range(4): g(f"v_rcp_f32 v{inv[qt]}, v{vL+qt}")
    stamp(g, cfg, "attn_end")
    def norm(f):
        r = Rec()
        qt, s = f // 4, f % 4
        src = O(qt, 2 * s)
        tmp = 128 + 8 * (f % 4)
        dst = 160 + 4 * (f % 8)
        for i in range(8): r(f"v_accvgpr_read_b32 v{tmp+i}, a{src+i}")
        if f < cfg.npk:
            for i in range(8): r(f"v_mul_f32 v{tmp+i}, v{tmp+i}, v{inv[qt]}")
        else:
            for i in range(0, 8, 2): r(f"v_pk_mul_f32 v[{tmp+i}:{tmp+i+1}], v[{tmp+i}:{tmp+i+1}], v[{inv[qt]}:{inv[qt]+1}] op_sel_hi:[1,0]")
        for i in range(0, 8, 2): r(f"v_cvt_pk_bf16_f32 v{dst+i//2}, v{tmp+i}, v{tmp+i+1}")
        if f % 4 == 0 and f: r(f"s_add_u32 s{sST}, s{sST}, 4096")
        r.vmem(f"buffer_store_dwordx4 v[{dst}:{dst+3}], v{vOL}, s[{SWS}:{SWS+3}], s{sST} offen offset:{1024*(f%4)} {cfg.ofl.replace('_', ' ')}", "ost")
        return r.items
    mf = pv_mfmas(cfg, 1, border=True)
    nm = [it for f in range(16) for it in norm(f)]
    k = 0
    for i, m in enumerate(mf):
        g(m)
        if i >= 9:
            for it in nm[k:k + 5]: play(g, it)
            k += 5
    for it in nm[k:]: play(g, it)
    stamp(g, cfg, "stored", wait=True)
    g.wait_vm(f"W{nloop-1}")
    g("s_barrier")
    rec = Rec(); wo_dma(rec, nloop); wo_dma(rec, nloop + 1)
    dd = rec.items
    rest = list(range(nloop + 2, 16))
    nfirst = r0 + 2 * len(rest)
    for st in range(r0, 2 * nloop):
        for it in wo_read(st): play(g, it)
        if st == nfirst - 1:
            for it in dd: play(g, it)
            g.wait_lg(f"wr{st}")
            g("s_barrier")
            rec = Rec()
            for tau in rest: wo_dma(rec, tau)
            dd = rec.items
        for _ in range(2 if st < nfirst else 1):
            while dd and dd[0][0] != "v": play(g, dd.pop(0))
            if dd: play(g, dd.pop(0))
    for it in dd: play(g, it)
    g.wait_vm("ost")
    stamp(g, cfg, "ost_done", wait=True)
    g(f"v_mov_b32 v11, 1\ns_mov_b64 exec, 1")
    g.vmem(f"buffer_store_dword v11, v{vZ}, s[{SWS}:{SWS+3}], s{sFO} offen sc1", "flag")
    g("s_mov_b64 exec, -1")
    g.label("L_cnt")
    g(f"v_readfirstlane_b32 s{sT1}, v{vFL}\ns_cmp_ge_u32 s{sT1}, 32\ns_cbranch_scc0 L_cntspin")
    g.label("L_cntok")
    g.wait_vm("W15")
    g("s_barrier")
    for st in range(2 * nloop, 32):
        for it in wo_read(st): play(g, it)
    g(f"v_add_u32 v{vWR+1}, {64*K}, v{vOL}\nv_add_u32 v{vWR+2}, {128*K}, v{vOL}\nv_mov_b32 v{vWR}, v{vOL}")
    g.wait_all(vm=False, lg=True)
    g("s_barrier")
    stamp(g, cfg, "wo_done")
    def o_dma(rec, u):
        p, half = u // 2, u % 2
        rec.atom(f"""s_add_u32 s{sT2}, s{sOWN}, {p + 1}
        s_and_b32 s{sT2}, s{sT2}, 3
        s_and_b32 s{sT3}, s{sT2}, 2
        s_add_u32 s{sT3}, s{sT3}, {half}
        s_bitcmp1_b32 s{sRDY}, s{sT3}
        s_cbranch_scc0 L_poll{u}
        L_ok{u}:""")
        if u == 0: stamp(g, cfg, "poll_ok", wait=True)
        rec.atom(f"""s_add_u32 s{sT4}, s{sRW}, s{sWAVE}
        s_add_u32 s{sT4}, s{sT4}, {4 * half}
        s_and_b32 s{sT4}, s{sT4}, 7
        s_lshl_b32 s{sT4}, s{sT4}, 16
        s_lshl_b32 s{sT2}, s{sT2}, 13
        s_add_u32 s{sT4}, s{sT4}, s{sT2}
        s_add_u32 s{sT4}, s{sT4}, s{sOB}""")
        for grp in range(2):
            rec(f"s_add_u32 m0, s{sW8K}, {(u % 5) * 32768 + grp * 4096}")
            rec(f"s_add_u32 s{sT4}, s{sT4}, {grp * 4096}")
            dma_group(rec, SWS, [vOL] * 4, sT4, f"o{u}", " sc1")
    class Direct:
        def __init__(s, g): s.g = g
        def __call__(s, x): s.g(x)
        def atom(s, x): s.g(x)
        def vmem(s, x, t): s.g.vmem(x, t)
    NBUF = 10
    BF = [64 + 4 * i for i in range(NBUF)]
    def ACC(p, qt2, nt): return 128 + 16 * (p % 2) + 8 * qt2 + 4 * nt
    frs = [(u, hl, s, qt2) for u in range(8) for hl in range(4) for s in range(4) for qt2 in range(2)]
    def b_read(idx):
        u, hl, s, qt2 = frs[idx]
        pos = (u % 5) * 32768 + hl * 8192 + qt2 * 4096 + s * 1024
        a = pos // (64 * K)
        return ("d", f"ds_read_b128 {vr(BF[idx % NBUF],4)}, v{vWR+a} offset:{pos - a*64*K}", f"b{idx}")
    o_dma(Direct(g), 0); o_dma(Direct(g), 1)
    AHEAD = NBUF - 2
    BARPOS = 32 - AHEAD
    g.wait_vm("o0")
    g("s_barrier")
    for idx in range(AHEAD): play(g, b_read(idx))
    g.wait_lg("b1")
    def pstore(p):
        r = Rec(); r(f"s_movk_i32 s{sT1}, {p * 4096}")
        for k in range(4):
            a = ACC(p, 0, 0) + 4 * k
            r.vmem(f"buffer_store_dwordx4 v[{a}:{a+3}], v{vOL}, s[{SZ}:{SZ+3}], s{sT1} offen offset:{1024*k} sc1", f"ps{p}")
        return r.items
    PL = [104 + 4 * i for i in range(6)] + [160 + 4 * i for i in range(6)]
    def pload(r, p):
        r(f"s_add_u32 s{sT0}, s{sKG}, {3 - p}\ns_and_b32 s{sT0}, s{sT0}, 3\ns_mul_i32 s{sT0}, s{sT0}, {4 * 12288}\ns_add_u32 s{sT0}, s{sT0}, s{sPB}\ns_add_u32 s{sT0}, s{sT0}, {p * 4096}")
        for k in range(4):
            q = PL[4 * p + k]
            r.vmem(f"buffer_load_dwordx4 v[{q}:{q+3}], v{vOL}, s[{SWS}:{SWS+3}], s{sT0} offen offset:{1024*k} sc1", f"pl{p}")
    for u in range(8):
        p = u // 2
        stamp(g, cfg, f"u{u}", wait=True)
        mf = []; streams = []
        for li in range(32):
            idx = 32 * u + li
            _, hl, s, qt2 = frs[idx]
            st = (4 * (u % 2) + hl) * 4 + s
            for nt in range(2):
                d = vr(ACC(p, qt2, nt), 4)
                mf.append(f"{MF} {d}, {rr(WOF(st,nt),4)}, {vr(BF[idx % NBUF],4)}, {'0' if st == 0 else d}")
            if idx + AHEAD < len(frs): streams.append(([b_read(idx + AHEAD)], 2 * li, 2 * li))
            if li % 2 == 1 and idx + 2 < len(frs): streams.append(([("wl", (f"b{idx+2}",), None)], 2 * li + 1, 2 * li + 1))
            if li == BARPOS - 1 and u < 7:
                streams.append(([("wv", (f"o{u+1}",), None), ("i", "s_barrier", None)], 2 * li + 1, 2 * li + 1))
        side = []
        if u % 2 == 0 and u >= 2: side += pstore(p - 1)
        if u + 2 < 8:
            r = Rec(); o_dma(r, u + 2); side += r.items
        if u == 6:
            r = Rec()
            r(f"v_lshlrev_b32 v5, 10, v2\nv_lshl_add_u32 v5, v3, 4, v5")
            pload(r, 0); side += r.items
        streams.append((side, 6, 62, 40))
        if u == 7:
            r = Rec(); pload(r, 1); streams.append((r.items, 2, 24, 40))
            r = Rec(); pload(r, 2); streams.append((r.items, cfg.pl2_at, 62, 40))
        emit_block(g, mf, streams, name=f"u{u}")
    stamp(g, cfg, "gemm_done", wait=True)
    g.label("L_pp")
    g("s_waitcnt vmcnt(0)")
    regs = [q + i for q in PL for i in range(4)]
    g(f"v_max3_u32 v10, v{regs[0]}, v{regs[1]}, v{regs[2]}\nv_max3_u32 v11, v{regs[3]}, v{regs[4]}, v{regs[5]}")
    for i in range(6, 46, 4):
        g(f"v_max3_u32 v10, v10, v{regs[i]}, v{regs[i+1]}\nv_max3_u32 v11, v11, v{regs[i+2]}, v{regs[i+3]}")
    g(f"v_max3_u32 v10, v10, v{regs[46]}, v{regs[47]}\nv_max_u32 v10, v10, v11")
    g("v_cmp_eq_u32 vcc, -1, v10\ns_cbranch_vccnz L_ppspin")
    g.label("L_pp_ok")
    g.vm = []
    stamp(g, cfg, "poll2_ok", wait=True)
    a = ACC(3, 0, 0)
    for i in range(16): g(f"v_add_f32 v{regs[i]}, v{regs[i]}, v{regs[16+i]}\nv_add_f32 v{a+i}, v{a+i}, v{regs[32+i]}")
    for i in range(16): g(f"v_add_f32 v{a+i}, v{a+i}, v{regs[i]}")
    for i in range(8): g(f"v_cvt_pk_bf16_f32 v{64+i}, v{a+2*i}, v{a+2*i+1}")
    global PPSPIN
    r = Rec()
    for p in range(3): pload(r, p)
    PPSPIN = [it[1] for it in r.items]
    g(f"s_add_u32 s{sT0}, s{sOUTB}, 16384")
    g(f"buffer_store_dwordx4 v[64:67], v5, s[{SOUT}:{SOUT+3}], s{sOUTB} offen")
    g(f"buffer_store_dwordx4 v[68:71], v5, s[{SOUT}:{SOUT+3}], s{sT0} offen")
    if cfg.diag:
        g("s_waitcnt vmcnt(0)")
        stamp(g, cfg, "end", wait=True)
        stamp(g, cfg, "x", wait=True, record=False)
        g(f"s_lshl_b32 s{sT0}, s2, 2\ns_add_u32 s{sT0}, s{sT0}, s{sWAVE}\ns_lshl_b32 s{sT0}, s{sT0}, 8\ns_add_u32 s{sT0}, s{sT0}, {WS_STAMP}")
        g(f"v_lshlrev_b32 v10, 2, v{vLANE}")
        g(f"buffer_store_dword v{vST}, v10, s[{SWS}:{SWS+3}], s{sT0} offen")
    g.label("L_end")
    g("s_endpgm")

def spins(g, cfg):
    g.label("L_cntspin")
    g(f"""
    s_add_u32 s{sSPIN}, s{sSPIN}, 1
    s_cmp_gt_u32 s{sSPIN}, {SPIN_MAX}
    s_cbranch_scc1 L_cntok
    s_sleep 2
    buffer_load_dword v{vFL}, v{vZ}, s[{SDBG}:{SDBG+3}], s{sCN} offen sc1
    s_waitcnt vmcnt(0)
    s_branch L_cnt
    """)
    g.label("L_ppspin")
    g(f"s_add_u32 s{sSPIN}, s{sSPIN}, 1\ns_cmp_gt_u32 s{sSPIN}, {SPIN_MAX}\ns_cbranch_scc1 L_pp_ok")
    for l in PPSPIN: g(l)
    g("s_branch L_pp")
    for u in range(8):
        g.label(f"L_poll{u}")
        g(f"""
        buffer_load_dword v{vFL}, v{vFA}, s[{SWS}:{SWS+3}], s{sFC1} offen sc1
        s_add_u32 s{sSPIN}, s{sSPIN}, 1
        s_waitcnt vmcnt(0)
        v_cmp_eq_u32 vcc, 1, v{vFL}
        s_cmp_gt_u32 s{sSPIN}, {SPIN_MAX}
        s_cbranch_scc1 L_ok{u}
        s_mov_b32 s{sRDY}, vcc_lo
        s_bitcmp1_b32 s{sRDY}, s{sT3}
        s_cbranch_scc1 L_ok{u}
        s_branch L_poll{u}
        """)

Cfg.npk = 6
Cfg.wnt = 2
Cfg.zfl = 'sc1'
Cfg.ofl = 'sc1'
Cfg.ctouch = True
Cfg.noz = False
Cfg.bydl = True
Cfg.ring5 = False
Cfg.margin = 5
Cfg.first = 0
Cfg.fast = 2.0
Cfg.knee = 12
Cfg.wrounds = 0
Cfg.wfirst = 44
Cfg.zfirst = 5
Cfg.zstep = 2
Cfg.sp31 = 30
Cfg.pl2_at = 36

def build(cfg):
    g = Gen()
    plan, moves, nloop = make_plan(cfg)
    print("plan:", " ".join(f"{b}:{plan[b]}" for b in sorted(plan)), "| moves", moves, "nloop", nloop)
    setup(g, cfg)
    late = qproj(g, cfg)
    smrest, ck = attention(g, cfg, late, plan, moves)
    tail(g, cfg, smrest, ck, nloop)
    stubs(g, cfg)
    spins(g, cfg)
    fallback(g, 0); fallback(g, 1)
    errs = check_hazards(g.lines, "lin")
    for e in errs: print("HAZARD", e, file=sys.stderr)
    src = (HEADER + (("; STAMPS " + " ".join(STAMPS) + "\n") if cfg.diag else "") + "; @launch grid=(256,1,1) block=(256,1,1) lds=163840\n"
        '.amdgcn_target "amdgcn-amd-amdhsa--gfx950"\n.text\n'
        f".globl {KNAME}\n.p2align 8\n.type {KNAME},@function\n{KNAME}:\n"
        + g.text() +
        '.section .rodata,"a"\n.p2align 6\n'
        f".amdhsa_kernel {KNAME}\n"
        "  .amdhsa_next_free_vgpr 512\n  .amdhsa_next_free_sgpr 102\n  .amdhsa_accum_offset 256\n"
        "  .amdhsa_group_segment_fixed_size 0\n  .amdhsa_kernarg_size 64\n  .amdhsa_user_sgpr_count 2\n"
        "  .amdhsa_user_sgpr_kernarg_segment_ptr 1\n  .amdhsa_system_sgpr_workgroup_id_x 1\n"
        ".end_amdhsa_kernel\n")
    return src, errs

if __name__ == "__main__":
    cfg = Cfg()
    out = sys.argv[1]
    for kv in sys.argv[2:]:
        k, v = kv.split("=")
        cur = getattr(cfg, k)
        setattr(Cfg, k, bool(eval(v)) if isinstance(cur, bool) else (v if isinstance(cur, str) else type(cur)(eval(v))))
    src, errs = build(cfg)
    assert not errs
    open(out, "w").write(src)
    print(" ".join(f"{n}:{c}" for n, c in REPORT))
    print(f"wrote {out}: {src.count(chr(10))} lines, {len(errs)} hazard findings")
```

```python
import sys, math, struct
from core import *
from sched import schedule, gap_report

KNAME = "standalone__mha_block_cached__near_ridge_kernel"
HEADER = """; Kernarg layout for this problem (64 bytes, ptrs only, base s[0:1]):
"""
K = 1024
XSL = [0, 64 * K]
WSL = [32, 40, 96, 104, 48, 56, 112, 120] * 2
WB = [32 * K, 96 * K]
TP = {}

sWAVE = 3
SX, SWQ, SK, SV, SWO, SWS, SOUT, SDBG, SA, SB = 4, 8, 12, 16, 20, 24, 28, 32, 36, 40
sSOFFA, sSOFFB, sLDSA, sDB, sJ, sKD, sVD, sSTEP = 44, 45, 46, 47, 48, 49, 50, 51
sB, sH, sKG, sRB, sCB, sRW = 52, 53, 54, 55, 56, 57
sT0, sT1, sT2, sT3 = 58, 59, 60, 61
sTHR, sC4K, sC4V = 62, 63, 80
sC16K, sSPIN, sOWN, sPB, sFO, sFC1, sFC2, sOUTB = 66, 67, 68, 69, 70, 76, 77, 78
sW4K = 81
sPC = 44
SZ = 72
sNON, sOKV = 64, 65
sXS, sXL = 82, 83
sSC = 84
sOB, sST = 88, 89
sSTAMP, sSTC = 90, 92
sROT, sT4, sWS_, sWL, sRDY, sCN, sW8K = 94, 95, 96, 97, 98, 99, 100

vLANE = 1
vKA = 16
vVA = 20
vOA = 32
vOB = 36
vOW = 40
vRO = 40
vL = 44
vCK, vST = 48, 49
vWO = 50
vT = 52
NT = 8
vONE = 60
vSEN = 28
vWR = 13
vOL, vFL, vFA, vZ, vCT, vNON = 4, 38, 51, 50, 6, 8
vBR = 28
def P(par, qt): return 64 + 16 * par + 4 * qt
def NEGM(qt): return 96 + 4 * qt
def LS(qt): return 112 + 4 * qt
def S(par, qt): return 128 + 32 * par + 8 * qt
def Q(qt, s): return 192 + 16 * qt + 4 * s
def QACC(qt, tile): return 128 + 32 * qt + 4 * tile
def O(qt, t): return 32 * qt + 4 * t
def KF(kt, s): return 128 + 16 * kt + 4 * s
def VF(t): return 160 + 4 * t
def WF(st, tile): return 128 + 32 * st + 4 * tile
XH = [256, 288, 320, 352, 448, 480, 64, 96]
def XF(c, ks, qt): return XH[c] + 16 * ks + 4 * qt

WS_PART = 16 * K * K
WS_FLAGS = 28 * K * K
WS_STAMP = 32 * K * K
WS_QDUMP = 64 * K * K
FS = 256
SPIN_MAX = 400000
MF = "v_mfma_f32_16x16x32_bf16"
def f32bits(x): return struct.unpack("<I", struct.pack("<f", x))[0]

class Cfg:
    diag = 0
    qdump = False
    thr = 16384.0
    nt_kv = True
    rot = True
    tlb = True
    wotouch = True
    qs = "b"
    pv_b = True
    qk_b = False
    sm_split = 24
    lead = 2
    dloop = False
    zmode = "loop"

STAMPS = []
def stamp(g, cfg, name, first=False, rep=1, record=True, wait=False):
    if not cfg.diag:
        return
    if cfg.dloop and name not in ("start", "x", "blk", "end"):
        return
    if not cfg.dloop and name == "blk":
        return
    if record:
        STAMPS.extend([name] if rep == 1 else [f"{name}{i}" for i in range(rep)])
    if first:
        g(f"s_mov_b64 s[{sSTC}:{sSTC+1}], 1")
    else:
        if wait: g("s_waitcnt lgkmcnt(0)")
        g(f"s_mov_b64 exec, s[{sSTC}:{sSTC+1}]\nv_mov_b32 v{vST}, s{sSTAMP}\ns_mov_b64 exec, -1\ns_lshl_b64 s[{sSTC}:{sSTC+1}], s[{sSTC}:{sSTC+1}], 1")
    g(f"{'s_memrealtime' if cfg.diag == 1 else 's_memtime'} s[{sSTAMP}:{sSTAMP+1}]")

class Rec(Gen):
    def __init__(self):
        super().__init__(); self.items = []
    def __call__(self, s):
        for l in s.strip("\n").split("\n"):
            l = l.strip()
            if l: self.items.append(("i", l, None))
    def vmem(self, s, tag=None): self.items.append(("v", s, tag))
    def ds(self, s, tag=None): self.items.append(("d", s, tag))
    def atom(self, s): self.items.append(("i", s.strip(), None))
    def wv(self, *tags): self.items.append(("wv", tags, None))
    def wl(self, *tags): self.items.append(("wl", tags, None))

def play(g, it):
    k, s, tag = it
    if k == "i": g(s)
    elif k == "v": g.vmem(s, tag)
    elif k == "v2": g.vmem(s, tag); g.vm.append(tag)
    elif k == "wv": g.wait_vm(*s)
    elif k == "wl": g.wait_lg(*s)
    else: g.ds(s, tag)

REPORT = []
SSTATE = {"since_dma": 99}
def emit_block(g, mfmas, streams, name=None, dma_gap=4):
    ss = []
    for t in streams:
        d = dict(items=t[0], first=t[1], last=t[2])
        if len(t) > 3: d["ahead"] = t[3]
        ss.append(d)
    gaps = schedule(len(mfmas), ss, dma_gap=dma_gap, state=SSTATE)
    if name: REPORT.append((name, gap_report(mfmas, gaps)))
    for m, gap in zip(mfmas, gaps):
        g(m)
        for it in gap:
            play(g, it)

def srd(g, d, lo, hi, size, off=None):
    if off is None:
        g(f"s_mov_b32 s{d}, s{lo}\ns_mov_b32 s{d+1}, s{hi}")
    else:
        g(f"s_add_u32 s{d}, s{lo}, {off}\ns_addc_u32 s{d+1}, s{hi}, 0")
    g(f"s_mov_b32 s{d+2}, {size}\ns_mov_b32 s{d+3}, 0x20000")

def dma_group(g, srdreg, vregs, soff, tag, fl=""):
    for n in range(4):
        g.vmem(f"buffer_load_dwordx4 v{vregs[n]}, s[{srdreg}:{srdreg+3}], s{soff} offen offset:{1024*n}{fl} lds", tag)

def setup(g, cfg):
    g(f"""
    s_cmp_ge_u32 s2, 256
    s_cbranch_scc1 L_end
    s_load_dwordx16 s[64:79], s[0:1], 0
    """)
    stamp(g, cfg, "start", first=True)
    g(f"""
    v_lshrrev_b32 v2, 6, v0
    v_and_b32 v{vLANE}, 63, v0
    v_readfirstlane_b32 s{sWAVE}, v2
    s_bfe_u32 s{sT0}, s2, 0x20003
    s_lshr_b32 s{sT1}, s2, 5
    s_and_b32 s{sB}, s2, 1
    s_lshl_b32 s{sB}, s{sB}, 2
    s_add_u32 s{sB}, s{sB}, s{sT0}
    s_bfe_u32 s{sKG}, s2, 0x20001
    s_lshl_b32 s{sH}, s{sKG}, 3
    s_add_u32 s{sH}, s{sH}, s{sT1}
    s_and_b32 s{sRB}, s{sT1}, 1
    s_lshr_b32 s{sCB}, s{sT1}, 1
    s_lshl_b32 s{sT0}, s{sT0}, 1
    s_add_u32 s{sRW}, s{sT0}, s{sRB}
    s_add_u32 s{sROT}, s{sT0}, s{sT1}
    s_and_b32 s{sROT}, s{sROT}, 7
    s_lshl_b32 s{sW4K}, s{sWAVE}, 12
    s_lshl_b32 s{sW8K}, s{sWAVE}, 13
    """)
    if not cfg.rot:
        g(f"s_mov_b32 s{sROT}, 0\ns_mov_b32 s{sRW}, 0")
    g(f"""
    v_and_b32 v2, 15, v{vLANE}
    v_lshrrev_b32 v3, 4, v{vLANE}
    v_lshrrev_b32 v5, 3, v{vLANE}
    v_and_b32 v6, 7, v{vLANE}
    v_bfe_u32 v7, v{vLANE}, 2, 2
    v_xor_b32 v8, v6, v3
    v_lshlrev_b32 v8, 4, v8
    v_lshl_add_u32 v{vRO}, v5, 10, v8
    v_xor_b32 v8, 64, v{vRO}
    v_add_u32 v{vRO+1}, 7168, v8
    v_add_u32 v{vRO+2}, {2*7168}, v{vRO}
    v_add_u32 v{vRO+3}, {3*7168}, v8
    v_lshlrev_b32 v8, 2, v3
    v_xor_b32 v8, v2, v8
    v_lshlrev_b32 v9, 4, v8
    v_lshl_add_u32 v{vWO}, v3, 13, v9
    v_add_u32 v{vWO+1}, 31744, v{vWO}
    s_lshl_b32 s{sXS}, s{sB}, 18
    s_lshl_b32 s{sT0}, s{sWAVE}, 16
    s_add_u32 s{sXS}, s{sXS}, s{sT0}
    s_lshl_b32 s{sWS_}, s{sH}, 8
    s_add_u32 s{sWS_}, s{sWS_}, s{sT0}
    s_lshl_b32 s{sWL}, s{sWAVE}, 11
    s_lshl_b32 s{sXL}, s{sROT}, 19
    s_waitcnt lgkmcnt(0)
    """)
    srd(g, SWQ, 70, 71, 4 * K * K)
    srd(g, SX, 64, 65, 2 * K * K)

def setup_late(g, cfg):
    g(f"s_lshl_b32 s{sT0}, s{sB}, 5\ns_add_u32 s{sT0}, s{sT0}, s{sH}\ns_lshl_b32 s{sT1}, s{sT0}, 18")
    srd(g, SK, 66, 67, 256 * K, f"s{sT1}")
    srd(g, SV, 68, 69, 256 * K, f"s{sT1}")
    srd(g, SWO, 72, 73, 4 * K * K)
    srd(g, SWS, 78, 79, 128 * K * K)
    srd(g, SOUT, 74, 75, 2 * K * K)
    srd(g, SDBG, 76, 77, 256)
    g(f"""
    s_lshl_b32 s{sST}, s{sT0}, 16
    s_lshl_b32 s{sT1}, s{sWAVE}, 14
    s_add_u32 s{sST}, s{sST}, s{sT1}
    s_lshl_b32 s{sT0}, s{sT0}, 2
    s_add_u32 s{sT0}, s{sT0}, s{sWAVE}
    s_mul_i32 s{sT0}, s{sT0}, {FS}
    s_add_u32 s{sFO}, s{sT0}, {WS_FLAGS}
    s_add_u32 s{sOWN}, s{sKG}, s{sCB}
    s_and_b32 s{sOWN}, s{sOWN}, 3
    s_lshl_b32 s{sT0}, s{sB}, 1
    s_add_u32 s{sT0}, s{sT0}, s{sRB}
    s_lshl_b32 s{sT0}, s{sT0}, 2
    s_add_u32 s{sT0}, s{sT0}, s{sCB}
    s_mul_i32 s{sPB}, s{sT0}, {16 * 9216}
    s_mul_i32 s{sT1}, s{sWAVE}, 9216
    s_add_u32 s{sPB}, s{sPB}, s{sT1}
    s_add_u32 s{sPB}, s{sPB}, {WS_PART}
    s_mul_i32 s{sT1}, s{sKG}, {4 * 9216}
    s_add_u32 s{sT1}, s{sT1}, s{sPB}
    s_add_u32 s{SZ}, s{SWS}, s{sT1}
    s_addc_u32 s{SZ+1}, s{SWS+1}, 0
    s_mov_b32 s{SZ+2}, 9216
    s_mov_b32 s{SZ+3}, 0x20000
    v_lshlrev_b32 v4, 4, v{vLANE}
    v_mov_b32 v11, 0
    """)
    g(f"""
    s_memrealtime s[46:47]
    s_lshl_b32 s{sCN}, s{sB}, 5
    v_mov_b32 v14, 1
    s_waitcnt lgkmcnt(0)
    v_mov_b32 v15, s46
    s_cmp_eq_u32 s{sWAVE}, 2
    s_cselect_b32 s{sT2}, s{sCN}, 0x1000
    s_mov_b64 exec, 1
    """)
    g.vmem(f"buffer_atomic_add_x2 v[14:15], v11, s[{SDBG}:{SDBG+3}], s{sT2} offen sc1", "cnt")
    if cfg.tlb:
        g(f"s_lshl_b32 s{sT2}, s{sB}, 18\ns_lshl_b32 s{sT3}, s{sKG}, 20")
        g.vmem(f"buffer_load_dword v{vT+4}, v11, s[{SK}:{SK+3}], 0 offen nt", "tlb")
        g.vmem(f"buffer_load_dword v{vT+5}, v11, s[{SV}:{SV+3}], 0 offen nt", "tlb")
        g.vmem(f"buffer_load_dword v{vT+6}, v11, s[{SOUT}:{SOUT+3}], s{sT2} offen nt", "tlb")
        g.vmem(f"buffer_load_dword v{vT+7}, v11, s[{SWO}:{SWO+3}], s{sT3} offen nt", "tlb")
    g("s_mov_b64 exec, -1")
    g(f"""
    v_xor_b32 v8, v2, v3
    v_lshlrev_b32 v8, 4, v8
    v_lshl_add_u32 v{vOA}, v3, 8, v8
    v_xor_b32 v{vOA+1}, 64, v{vOA}
    v_xor_b32 v{vOA+2}, 0x80, v{vOA}
    v_xor_b32 v{vOA+3}, 0xc0, v{vOA}
    v_lshlrev_b32 v8, 1, v3
    v_xor_b32 v8, v2, v8
    v_lshlrev_b32 v8, 4, v8
    v_lshl_add_u32 v{vOB}, v3, 8, v8
    v_xor_b32 v{vOB+1}, 0x80, v{vOB}
    """)
    g(f"""
    v_and_b32 v12, 3, v{vLANE}
    v_lshl_add_u32 v13, v3, 3, v7
    v_lshlrev_b32 v13, 8, v13
    v_lshl_add_u32 v13, v7, 6, v13
    v_lshl_add_u32 v13, v12, 4, v13
    v_add_u32 v{vVA}, {WB[0]}, v13
    v_add_u32 v{vVA+4}, {WB[1]}, v13
    """)
    for s in range(1, 4):
        g(f"v_xor_b32 v{vVA+s}, {s<<6}, v{vVA}\nv_xor_b32 v{vVA+4+s}, {s<<6}, v{vVA+4}")
    g(f"""
    v_lshrrev_b32 v13, 1, v2
    v_xor_b32 v13, v13, v3
    v_lshlrev_b32 v13, 4, v13
    v_lshl_add_u32 v13, v2, 7, v13
    v_add_u32 v13, s{sW8K}, v13
    v_add_u32 v{vKA}, {XSL[0]}, v13
    v_add_u32 v{vKA+2}, {XSL[1]}, v13
    v_xor_b32 v{vKA+1}, 64, v{vKA}
    v_xor_b32 v{vKA+3}, 64, v{vKA+2}
    s_mov_b32 s{sTHR}, {f32bits(cfg.thr):#x}
    s_mov_b32 s{sSC}, {f32bits(math.log2(math.e) / math.sqrt(128.0)):#x}
    s_mov_b32 s{sSC+1}, s{sSC}
    """)
    for i in range(4):
        g(f"v_mov_b32 v{vL+i}, 0\nv_mov_b32 v{vONE+i}, 0x3f803f80")

def code_touch(g, cfg, lo, hi, share=True):
    lab = g.newlabel("L_pc") if hasattr(g, "newlabel") else None
    g(f"""s_getpc_b64 s[{sPC}:{sPC+1}]
    {lab}:
    s_add_u32 s{sPC}, s{sPC}, {lo}-{lab}
    s_addc_u32 s{sPC+1}, s{sPC+1}, 0
    s_lshr_b32 s{sT2}, s2, 3
    s_lshl_b32 s{sT2}, s{sT2}, 2
    s_add_u32 s{sT2}, s{sT2}, s{sWAVE}
    s_lshl_b32 s{sT3}, s{sT2}, 7
    v_mov_b32 v{vCT}, s{sT3}
    v_lshlrev_b32 v10, 7, v{vLANE}
    v_add_u32 v10, s{sT2}, v10
    v_lshlrev_b32 v10, 7, v10
    v_cmp_gt_u32 vcc, {hi}-{lo}, v10
    s_and_saveexec_b64 s[86:87], vcc""")
    g.vmem(f"global_load_dword v{vT+3}, v10, s[{sPC}:{sPC+1}]", "ct")
    g("s_mov_b64 exec, -1")

def kaddr_items():
    r = Rec()
    r(f"""
    v_xor_b32 v10, v2, v3
    v_lshlrev_b32 v10, 4, v10
    v_lshl_add_u32 v10, v2, 8, v10
    v_add_u32 v{vKA}, {BASE["K"]}, v10
    """)
    for s in range(1, 4): r(f"v_xor_b32 v{vKA+s}, {s<<6}, v{vKA}")
    return r.items

def vaddr_items():
    r = Rec()
    r(f"""
    v_lshl_add_u32 v10, v3, 2, v7
    v_and_b32 v11, 7, v10
    v_lshlrev_b32 v10, 8, v10
    v_lshl_add_u32 v10, v11, 5, v10
    v_lshl_add_u32 v10, v12, 3, v10
    v_add_u32 v{vVA}, {BASE['V']}, v10
    """)
    for t in range(1, 8): r(f"v_xor_b32 v{vVA+t}, {t<<5}, v{vVA}")
    return r.items

def kv_group(g, cfg, kind, j):
    srdreg, vregs = (SK, [vOA + n for n in range(4)]) if kind == "K" else (SV, [vOB + n % 2 for n in range(4)])
    g(f"s_add_u32 m0, s{sW4K}, {TP[f'{kind}{j}']}\ns_add_u32 s{sT0}, s{sW4K}, {16384 * j}")
    dma_group(g, srdreg, vregs, sT0, f"{kind}{j}", " nt" if cfg.nt_kv else "")

def wo_dma(rec, tau):
    rec(f"s_add_u32 s{sT0}, s{sXS}, {tau * 65536}")
    rec(f"s_add_u32 m0, s{sW4K}, {TP[f'W{tau}']}")
    rec(f"s_and_b32 s{sT0}, s{sT0}, 0xfffff")
    dma_group(rec, SWO, [vOW + n for n in range(4)], sT0, f"W{tau}", " nt" if tau < Cfg.wnt else "")

def load(g, cfg, name):
    if name[0] == "x": x_dma(g, cfg, int(name[1]), "ab".index(name[2]))
    elif name[0] == "w": w_dma(g, cfg, int(name[1:]))
    elif name[0] == "W": wo_dma(g, int(name[1:]))
    elif name[0] == "C":
        k = int(name[1:])
        g.atom(f"s_add_u32 s46, s{sPC}, {k * 16384}\ns_addc_u32 s47, s{sPC+1}, 0")
        g.vmem(f"global_load_dword v5, v{vCT}, s[46:47]", "ct")
    elif name == "N":
        g.vmem(f"buffer_load_dwordx2 v[{vFL}:{vFL+1}], v{vZ}, s[{SDBG}:{SDBG+3}], s{sCN} offen sc1", "non")
        g.vmem(f"buffer_load_dword v5, v{vFA}, s[{SWS}:{SWS+3}], s{sFC1} offen {cfg.pfl}", "pre")
    else: kv_group(g, cfg, name[0], int(name[1:]))

BASE = {"K": 128 * K, "V": 128 * K}
def rebase_items(kind, pos):
    want = 128 * K if pos >= 128 * K else (0 if kind == "K" else 64 * K)
    r = Rec()
    if want != BASE[kind]:
        for i in (range(vKA, vKA + 4) if kind == "K" else range(vVA, vVA + 8)):
            r(f"v_add_u32 v{i}, {(want - BASE[kind]) & 0xffffffff:#x}, v{i}")
        BASE[kind] = want
    return r.items

def x_dma(g, cfg, c, grp):
    if grp == 0:
        g(f"s_add_u32 s{sT4}, s{sROT}, {c}\ns_and_b32 s{sT4}, s{sT4}, 7\ns_lshl_b32 s{sT4}, s{sT4}, 7")
    g(f"s_add_u32 m0, s{sW8K}, {XSL[c % 2] + grp * 4096}")
    g(f"s_add_u32 s{sT4}, s{sT4}, " + (f"s{sXS}" if grp == 0 else "32768"))
    dma_group(g, SX, [vRO + n for n in range(4)], sT4, f"x{c}")

def w_dma(g, cfg, k):
    g(f"s_add_u32 s{sT0}, s{sXL}, {k << 18}\ns_and_b32 s{sT0}, s{sT0}, 0x3fffff")
    g(f"s_add_u32 m0, s{sWL}, {WSL[k] * K}")
    g(f"s_add_u32 s{sT0}, s{sT0}, s{sWS_}")
    for n in range(2):
        g.vmem(f"buffer_load_dwordx4 v{vWO+n}, s[{SWQ}:{SWQ+3}], s{sT0} offen offset:{1024*n} lds", f"w{k}")

def kfrag_reads(i):
    off = TP[f"K{i//2}"] - BASE["K"] + (i % 2) * 8192
    assert 0 <= off < 65536 - 4096
    r = Rec()
    for s in range(4):
        for kt in range(2):
            r.ds(f"ds_read_b128 {ar(KF(kt,s),4)}, v{vKA+s} offset:{off + kt*4096}", f"kf{i}_{s}")
    return r.items

def vfrag_reads(i):
    off = TP[f"V{i//2}"] - BASE["V"] + (i % 2) * 8192
    assert 0 <= off < 65536 - 4096
    r = Rec()
    for t in range(8):
        for hf in range(2):
            r.ds(f"ds_read_b64_tr_b16 {ar(VF(t)+2*hf,2)}, v{vVA+t} offset:{off + hf*4096}", f"vf{i}")
    return r.items

QS = {
 "a": dict(xread=[-1, 0, 2, 3, 5, 6, 8, 9],
           d={-2: "w0 x0a x0b w1 w2 x1a x1b w3", -1: "K0 V0",
              0: "x2a x2b", 1: "w4 w5 x3a", 2: "x3b w6 w8", 3: "x4a x4b", 4: "w7 w9 x5a", 5: "x5b w10 w11", 6: "x6a x6b",
              7: "w12 w13 x7a", 8: "x7b w14 w15", 9: "K1 K2", 10: "V1", 12: "V2", 14: "K3", 16: "V3"}),
 "b": dict(xread=[-1, 0, 2, 3, 5, 6, 8, 9],
           d={-2: "w0 x0a x0b w1 w2 x1a x1b w3",
              0: "x2a x2b", 1: "w4 w5 x3a", 2: "x3b w6 w8", 3: "x4a x4b", 4: "w7 w9 x5a", 5: "x5b w10 w11", 6: "x6a x6b",
              7: "w12 w13 x7a", 8: "x7b w14 w15", 9: "K0 V0", 10: "K1", 12: "V1", 14: "K2", 16: "V2"}),
 "d": dict(xread=[-1, 0, 2, 3, 5, 7, 9, 10],
           d={-2: "w0 x0a x0b w1 w2 x1a x1b w3",
              0: "x2a x2b", 1: "w4 w5 x3a", 2: "x3b w6 w7", 3: "x4a x4b", 4: "z0 x5a", 5: "x5b w8 w9", 6: "z1 x6a",
              7: "x6b w10 w11", 8: "x7a x7b", 9: "w12 w13 z2", 10: "w14 w15 K0", 11: "V0 K1", 13: "V1", 15: "K2", 16: "V2"}),
 "e": dict(xread=[-1, 0, 2, 3, 5, 6, 8, 9],
           d={-2: "w0 x0a x0b w1 w2 x1a x1b w3",
              0: "x2a x2b", 1: "w4 w5 x3a", 2: "x3b w6 w8", 3: "x4a x4b", 4: "w7 w9 x5a", 5: "x5b w10 w11", 6: "x6a x6b",
              7: "w12 w13 x7a", 8: "x7b w14 w15", 9: "z0 z1", 10: "z2 K0", 11: "V0 K1", 13: "V1", 15: "K2", 16: "V2"}),
 "c": dict(xread=[-1, 0, 2, 3, 5, 6, 8, 9],
           d={-2: "w0 x0a x0b w1 w2 x1a x1b w3 w4 w5", -1: "K0 V0",
              0: "x2a x2b", 1: "w6 w7 x3a", 2: "x3b w8 w9", 3: "x4a x4b", 4: "w10 w11 x5a", 5: "x5b w12 w13", 6: "x6a x6b",
              7: "w14 w15 x7a", 8: "x7b", 9: "K1 K2", 10: "V1", 12: "V2", 13: "K3", 15: "V3"}),
}

def make_plan(cfg):
    ring5 = cfg.ring5
    for kind, lo, st in (("K", 0, 128 * K), ("V", 64 * K, 144 * K)):
        n = 0
        for j in range(16):
            if j == 0 or (ring5 and j == 5): TP[f"{kind}{j}"] = st
            else:
                TP[f"{kind}{j}"] = lo + 16 * K * (n % 4); n += 1
    pre = " ".join(QS[cfg.qs]["d"].values()).split()
    units = [f"{k}{j}" for j in range(16) for k in "KV" if f"{k}{j}" not in pre]
    def prev(name):
        kind, j = name[0], int(name[1:])
        c = [i for i in range(j) if TP[f"{kind}{i}"] == TP[name]]
        return c[-1] if c else None
    earliest = {u: (0 if prev(u) is None else 4 * (prev(u) + 1)) for u in units}
    latest = {u: 4 * (int(u[1:]) - (1 if u[0] == "K" else 0)) - cfg.margin for u in units}
    if cfg.bydl: units.sort(key=lambda u: (latest[u], earliest[u]))
    plan = {}
    pos = float(cfg.first)
    n = len(units)
    for i, u in enumerate(units):
        pos = max(pos, earliest[u])
        if pos >= cfg.knee:
            step = min((latest[v] - pos) / (k - i) for k, v in enumerate(units) if k > i) if i + 1 < n else 0
        else:
            step = cfg.fast
        pos = max(pos, earliest[u])
        b = int(pos)
        while b in plan: b += 1
        assert b <= latest[u] + 2, (u, b, latest[u])
        plan[b] = u
        pos += max(step, 1.0)
    if cfg.v15:
        b = [b for b, u in plan.items() if u == "V15"][0]
        del plan[b]; plan[cfg.v15] = "V15"
    plan = {b: [u] for b, u in plan.items()}
    S0, S1 = 128 * K, 144 * K
    wt = [(S0, cfg.w0), (S1, cfg.w1), ("K12", cfg.w2), ("V12", cfg.w2 + 1), ("K13", 57), ("V13", 58), (S0, 60), (S1, 60), ("K12", 61), ("V12", 61),
          ("K14", 62), ("V14", 62), ("K13", None), ("V13", None), ("K15", None), ("V15", None)]
    for tau, (pos, b) in enumerate(wt):
        TP[f"W{tau}"] = pos if isinstance(pos, int) else TP[pos]
        if b is not None: plan.setdefault(b, []).append(f"W{tau}")
    for k, b in enumerate(cfg.cblk): plan.setdefault(b, []).append(f"C{k+1}")
    plan.setdefault(59, []).append("N")
    wvis = {14: ["W0", "W1", "W2", "W3"], 15: ["W4", "W5"]}
    wread = {28: range(0, 4), 29: range(4, 8), 31: range(8, 12)}
    return plan, wvis, wread

def qproj(g, cfg):
    qs = QS[cfg.qs]
    for name in qs["d"][-2].split(): load(g, cfg, name)
    if cfg.ctouch: code_touch(g, cfg, "L_code0", "L_end")
    g.label("L_code0")
    setup_late(g, cfg)
    for name in qs["d"].get(-1, "").split(): load(g, cfg, name)
    xlast = qs["xread"][7]
    free_after = {"K1": qs["xread"][6] + 1, "K2": qs["xread"][6] + 1, "V1": xlast + 1, "V2": xlast + 1, "K3": 9, "V3": 11, "K4": 13, "V4": 15}
    for k in range(8, 16): free_after[f"w{k}"] = k - 8
    for c in range(2, 8): free_after[f"x{c}a"] = free_after[f"x{c}b"] = qs["xread"][c - 2] + 1
    for h in range(-1, 16):
        g.comment(f"---- H({h})")
        if h + 1 <= 15:
            assert f"w{h+1}" not in " ".join(v for kk, v in qs["d"].items() if kk >= max(h, 0)).split()
            g.wait_vm(f"w{h+1}")
        else: g.wait_vm("K0", "K1", "V0")
        if h >= 0: g.wait_all(vm=False, lg=True)
        g("s_barrier")
        stamp(g, cfg, f"H{h}")
        xr = []
        if h in qs["xread"]:
            c = qs["xread"].index(h)
            assert h < 2 * c or c == 0
            assert f"x{c}b" not in " ".join(v for kk, v in qs["d"].items() if kk >= max(h, 0)).split()
            rd = Rec(); rd.wv(f"x{c}")
            for ks in range(2):
                for qt in range(4):
                    rd.ds(f"ds_read_b128 {rr(XF(c,ks,qt),4)}, v{vKA+2*(c%2)+ks} offset:{qt*2048}", f"xr{c}")
            xr = rd.items
        rd = Rec()
        if h + 1 <= 15:
            k = h + 1
            pos = WSL[k] * K
            st = int(pos >= WB[1]); base = WB[st]
            for s in range(4):
                for tb in range(2):
                    for hf in range(2):
                        rd.ds(f"ds_read_b64_tr_b16 {ar(WF(k%2, 2*s+tb)+2*hf,2)}, v{vVA+4*st+s} offset:{pos - base + hf*1024 + tb*8}")
        else:
            rd.items = kfrag_reads(0)
        wr = rd.items
        dm = Rec()
        for name in (qs["d"].get(h, "").split() if h >= 0 else []):
            assert h >= free_after.get(name, 0), name
            load(dm, cfg, name)
        misc = Rec()
        if h == 11: tail_setup(misc, cfg, 0)
        if h == 12: tail_setup(misc, cfg, 1)
        if h == 13: tail_setup(misc, cfg, 2)
        if h == 14:
            assert xlast < 14
            misc.items += kaddr_items()
        if h == 15: misc.items += vaddr_items()
        if h >= 8:
            for i in range(16 * (h - 8), 16 * (h - 7)): misc(f"v_accvgpr_write_b32 a{i}, 0")
        if h == -1:
            for it in wr + xr: play(g, it)
            continue
        c = h // 2
        order = [(qt, tile) for tile in range(8) for qt in range(4)]
        if h == 15: order = [(qt, tile) for qt in range(3, -1, -1) for tile in range(7, -1, -1)]
        mf = []
        for qt, tile in order:
            cc = "0" if h == 0 else vr(QACC(qt, tile), 4)
            mf.append(f"{MF} {vr(QACC(qt,tile),4)}, {ar(WF(h%2,tile),4)}, {rr(XF(c, h%2, qt),4)}, {cc}")
        emit_block(g, mf, [(dm.items, 0, 31, 40), (wr, 0, 20), (xr, 20, 27), (misc.items, 0, 31)], name=f"H{h}")
    return [n for n in qs["d"].get(16, "").split()]

def softmax_items(par):
    r = Rec()
    def T(i): return vT + (i % NT)
    pend = []
    for pi in range(16):
        qt, k = pi // 4, 2 * (pi % 4)
        r(f"v_exp_f32 v{T(2*pi)}, v{S(par,qt)+k}")
        if pi > 0:
            q0 = (pi - 1) // 4
            r(f"v_cvt_pk_bf16_f32 v{P(par,q0)+(pi-1)%4}, v{T(2*pi-2)}, v{T(2*pi-1)}")
        r(f"v_exp_f32 v{T(2*pi+1)}, v{S(par,qt)+k+1}")
        if pi % 4 == 1 and pi > 1:
            q0 = pi // 4 - 1
            r(f"{MF} {vr(LS(q0),4)}, {vr(vONE,4)}, {vr(P(par,q0),4)}, 0")
    r.atom(f"s_nop 0\nv_cvt_pk_bf16_f32 v{P(par,3)+3}, v{T(30)}, v{T(31)}")
    r.atom(f"s_nop 1\n{MF} {vr(LS(3),4)}, {vr(vONE,4)}, {vr(P(par,3),4)}, 0")
    return r.items

def check_items(site):
    r = Rec()
    r(f"v_add_f32 v{vCK}, v{LS(0)}, v{LS(1)}")
    r(f"v_add_f32 v{vCK}, v{vCK}, v{LS(2)}")
    a = r.items; r = Rec()
    r(f"v_add_f32 v{vCK}, v{vCK}, v{LS(3)}")
    r(f"v_cmp_nge_f32 vcc, s{sTHR}, v{vCK}")
    r.atom(f"s_cbranch_vccnz L_fb_{site}\nL_fbret_{site}:")
    b = r.items; r = Rec()
    for qt in range(4): r(f"v_add_f32 v{vL+qt}, v{vL+qt}, v{LS(qt)}")
    return a, b, r.items

def qk_mfmas(cfg, par, first_c=None):
    mf = []
    for s in range(4):
        order = [(kt, qt) for qt in range(4) for kt in range(2)] if (cfg.qk_b or s == 3) else [(kt, qt) for kt in range(2) for qt in range(4)]
        for kt, qt in order:
            d = vr(S(par, qt) + 4 * kt, 4)
            c = d if s else (first_c if first_c is not None else vr(NEGM(qt), 4))
            mf.append(f"{MF} {d}, {ar(KF(kt,s),4)}, {vr(Q(qt,s),4)}, {c}")
    return mf

def pv_mfmas(cfg, par, border=None):
    border = cfg.pv_b if border is None else border
    order = [(t, qt) for qt in range(4) for t in range(8)] if border else [(t, qt) for t in range(8) for qt in range(4)]
    return [f"{MF} {ar(O(qt,t),4)}, {ar(VF(t),4)}, {vr(P(par,qt),4)}, {ar(O(qt,t),4)}" for t, qt in order]

def rowmax4(g, par, dst, tmp):
    for qt in range(4):
        s = S(par, qt)
        g(f"v_max3_f32 v{dst+qt}, v{s}, v{s+1}, v{s+2}")
        g(f"v_max3_f32 v{tmp+qt}, v{s+3}, v{s+4}, v{s+5}")
    for qt in range(4):
        s = S(par, qt)
        g(f"v_max3_f32 v{dst+qt}, v{dst+qt}, v{s+6}, v{s+7}")
    for qt in range(4): g(f"v_max_f32 v{dst+qt}, v{dst+qt}, v{tmp+qt}")
    for op in ("v_permlane16_swap_b32", "v_permlane32_swap_b32"):
        for qt in range(4): g(f"v_mov_b32 v{tmp+qt}, v{dst+qt}")
        g("s_nop 1")
        for qt in range(4): g(f"{op} v{dst+qt}, v{tmp+qt}")
        for qt in range(4): g(f"v_max_f32 v{dst+qt}, v{dst+qt}, v{tmp+qt}")

def attention(g, cfg, late, plan, wvis, wread):
    SP = cfg.sm_split
    stamp(g, cfg, "qdone", wait=True)
    lr = Rec()
    for name in late: load(lr, cfg, name)
    lr = lr.items
    for p in range(63, -1, -1):
        src = 128 + 2 * p
        if p % 6 == 0 and lr:
            while lr[0][0] != "v": play(g, lr.pop(0))
            play(g, lr.pop(0))
        g(f"v_pk_mul_f32 v[{src}:{src+1}], v[{src}:{src+1}], s[{sSC}:{sSC+1}]")
        if p < 63:
            g(f"v_cvt_pk_bf16_f32 v{192+p+1}, v{src+2}, v{src+3}")
    g(f"v_cvt_pk_bf16_f32 v192, v128, v129\ns_nop 0")
    if cfg.qdump:
        g(f"s_add_u32 s{sT0}, s{sST}, {WS_QDUMP}\nv_lshlrev_b32 v10, 4, v{vLANE}")
        for f in range(16):
            if f % 4 == 0 and f: g(f"s_add_u32 s{sT0}, s{sT0}, 4096")
            g(f"buffer_store_dwordx4 v[{192+4*f}:{195+4*f}], v10, s[{SWS}:{SWS+3}], s{sT0} offen offset:{1024*(f%4)}")
        g("s_waitcnt vmcnt(0)")
    def side(b):
        r = Rec()
        for name in plan.get(b, []): load(r, cfg, name)
        return r.items
    g.wait_all(vm=False, lg=True)
    stamp(g, cfg, "qconv")
    kr = kfrag_reads(1)
    emit_block(g, qk_mfmas(cfg, 0, first_c="0"), [(side(0), 0, 28, 40)] + [(kr[2*i:2*i+2], 8*i+7, min(31, 8*i+8)) for i in range(4)])
    g("s_nop 5")
    rowmax4(g, 0, vT, vT + 4)
    for qt in range(4):
        for k in range(8): g(f"v_sub_f32 v{S(0,qt)+k}, v{S(0,qt)+k}, v{vT+qt}")
        for k in range(4): g(f"v_sub_f32 v{NEGM(qt)+k}, 0, v{vT+qt}")
    pend_l = []
    for i in range(32):
        par = i % 2
        j = i // 2
        sm = softmax_items(par)
        ck = check_items(i)
        if i == 0:
            for it in sm[:SP]: play(g, it)
            g.wait_all(vm=False, lg=True)
            rb = rebase_items("K", TP["K1"])
            emit_block(g, qk_mfmas(cfg, 1), [(vfrag_reads(0), 0, 26), (sm[SP:], 0, 25), (side(1), 0, 31, 40), (ck[0], 26, 27), (rb, 20, 29), (ck[1], 30, 31)], name="w0")
            pend_l = ck[2]
            continue
        extra = []
        if par == 0:
            need = [f"K{j+1}", f"V{j}"]
            need += wvis.get(j, [])
            g.wait_vm(*need)
            g.wait_all(vm=False, lg=True)
            g("s_barrier")
            stamp(g, cfg, f"it{j-1}")
        else:
            g.wait_all(vm=False, lg=True)
        if i in wread:
            its = []
            for st in wread[i]: its += wo_read(st)
            extra.append((its, 2, 56 if i < 31 else 30))
        if i == 31:
            mf = pv_mfmas(cfg, par ^ 1)
            emit_block(g, mf, [(pend_l, 0, 2), (sm[:cfg.sp31], cfg.lead, 31), (side(2 * i), 0, 31, 40)] + extra, name="w31")
            return sm[cfg.sp31:], ck
        rbv = rebase_items("V", TP[f"V{j}"])
        kr = kfrag_reads(i + 1)
        vrd = vfrag_reads(i)
        rbk = rebase_items("K", TP[f"K{(i+2)//2}"]) if i + 2 <= 31 else []
        mf = pv_mfmas(cfg, par ^ 1) + qk_mfmas(cfg, par ^ 1)
        wk = [([("wl", (f"kf{i+1}_3",), None)], 31, 31)]
        emit_block(g, mf, [(pend_l, 0, 2), (kr, 0, 24), (rbv, 3, 30), (sm, cfg.lead, 57), (side(2 * i), 1, 31, 40), (side(2 * i + 1), 32, 63, 40),
                           (vrd, 32, 58), (rbk, 32, 61), (ck[0], 58, 59), ([("i", "s_nop 0", None)] * 2, 60, 61), (ck[1], 62, 63)] + wk + extra, name=f"w{i}")
        pend_l = ck[2]

HOMES = [448 + 8 * i for i in range(8)] + [192 + 8 * i for i in range(8)] + [384 + 8 * i for i in range(8)] + [256 + 8 * i for i in range(8)]
def WOF(st, nt): return HOMES[st] + 4 * nt
def wo_read(st):
    pos = TP[f"W{st//2}"] + (st % 2) * 8192
    a = pos // (64 * K)
    r = Rec()
    for nt in range(2):
        for hf in range(2):
            r.ds(f"ds_read_b64_tr_b16 {rr(WOF(st,nt)+2*hf,2)}, v{vWR+a} offset:{pos - a*64*K + hf*4096 + nt*8}", f"wr{st}")
    return r.items

def tail_setup(g, cfg, part):
    if part == 0:
        g.atom(f"""s_lshl_b32 s{sT2}, s{sKG}, 20
        s_lshl_b32 s{sT1}, s{sCB}, 8
        s_add_u32 s{sT2}, s{sT2}, s{sT1}""")
        g.atom(f"s_add_u32 s{SWO}, s{SWO}, s{sT2}\ns_addc_u32 s{SWO+1}, s{SWO+1}, 0")
        g(f"s_sub_u32 s{SWO+2}, {K*K}, s{sT1}")
        g(f"v_lshl_add_u32 v{vOW}, v3, 10, v9")
        for n in range(1, 4): g(f"v_add_u32 v{vOW+n}, {3072*n}, v{vOW}")
        g(f"""
        s_lshl_b32 s{sXS}, s{sRW}, 17
        s_lshl_b32 s{sT1}, s{sWAVE}, 14
        s_add_u32 s{sXS}, s{sXS}, s{sT1}
        v_lshl_add_u32 v10, v3, 2, v7
        v_lshlrev_b32 v10, 8, v10
        v_xor_b32 v11, s{sWAVE}, v7
        v_lshl_add_u32 v10, v11, 6, v10
        v_lshl_add_u32 v{vWR}, v12, 4, v10
        v_add_u32 v{vWR+1}, {64*K}, v{vWR}
        v_add_u32 v{vWR+2}, {128*K}, v{vWR}
        v_mov_b32 v{vZ}, 0
        """)
    elif part == 1:
        g(f"""
        s_add_u32 s{sT2}, s{sRW}, s{sWAVE}
        v_and_b32 v10, 4, v{vLANE}
        v_add_u32 v10, s{sT2}, v10
        v_and_b32 v10, 7, v10
        v_bfe_u32 v11, v{vLANE}, 1, 1
        v_lshl_add_u32 v10, v10, 2, v11
        v_bfe_u32 v11, v{vLANE}, 3, 1
        v_lshl_add_u32 v10, v10, 1, v11
        v_and_b32 v11, 1, v{vLANE}
        v_lshlrev_b32 v11, 2, v11
        v_lshl_add_u32 v{vFA}, v10, 7, v11
        s_lshl_b32 s{sT2}, s{sB}, 2
        s_add_u32 s{sT2}, s{sT2}, s{sKG}
        s_lshl_b32 s{sOB}, s{sT2}, 19
        s_lshl_b32 s{sT1}, s{sRB}, 15
        s_add_u32 s{sOB}, s{sOB}, s{sT1}
        s_add_u32 s{sT1}, s{sRW}, s{sWAVE}
        s_and_b32 s{sT1}, s{sT1}, 7
        s_lshl_b32 s{sT1}, s{sT1}, 16
        s_xor_b32 s{sOKV}, s{sT1}, 0x40000
        s_add_u32 s{sOKV}, s{sOKV}, s{sOB}
        s_add_u32 s{sOB}, s{sOB}, s{sT1}
        s_lshl_b32 s{sT2}, s{sT2}, 5
        s_lshl_b32 s{sT1}, s{sRB}, 1
        s_add_u32 s{sT2}, s{sT2}, s{sT1}
        s_mul_i32 s{sT2}, s{sT2}, {FS}
        s_add_u32 s{sFC1}, s{sT2}, {WS_FLAGS}
        """)
    else:
        g(f"""
        s_mov_b32 s{sRDY}, 0
        s_mov_b32 s{sSPIN}, 0
        s_lshl_b32 s{sOUTB}, s{sB}, 18
        s_lshl_b32 s{sT2}, s{sRB}, 17
        s_add_u32 s{sOUTB}, s{sOUTB}, s{sT2}
        s_lshr_b32 s{sT2}, s{sOWN}, 1
        s_lshl_b32 s{sT2}, s{sT2}, 16
        s_add_u32 s{sOUTB}, s{sOUTB}, s{sT2}
        s_and_b32 s{sT2}, s{sOWN}, 1
        s_lshl_b32 s{sT2}, s{sT2}, 14
        s_add_u32 s{sOUTB}, s{sOUTB}, s{sT2}
        s_lshl_b32 s{sT2}, s{sCB}, 8
        s_add_u32 s{sOUTB}, s{sOUTB}, s{sT2}
        s_lshl_b32 s{sT2}, s{sWAVE}, 6
        s_add_u32 s{sOUTB}, s{sOUTB}, s{sT2}
        """)

def stubs(g, cfg):
    for i in range(32):
        g.label(f"L_fb_{i}")
        g(f"s_call_b64 s[86:87], L_rescale{i % 2}\ns_branch L_fbret_{i}")

def fallback(g, par):
    g.label(f"L_rescale{par}")
    g("s_nop 15\ns_nop 15")
    d, f = vT, vT + 4
    rowmax4(g, par, d, f)
    for qt in range(4):
        g(f"v_max_f32 v{d+qt}, 0, v{d+qt}")
        g(f"v_sub_f32 v{f+qt}, 0, v{d+qt}")
        g(f"v_exp_f32 v{f+qt}, v{f+qt}")
    for qt in range(4):
        for k in range(4): g(f"v_sub_f32 v{NEGM(qt)+k}, v{NEGM(qt)+k}, v{d+qt}")
        for k in range(8):
            g(f"v_sub_f32 v{S(par,qt)+k}, v{S(par,qt)+k}, v{d+qt}")
            g(f"v_sub_f32 v{S(par^1,qt)+k}, v{S(par^1,qt)+k}, v{d+qt}")
        g(f"v_mul_f32 v{vL+qt}, v{vL+qt}, v{f+qt}")
        for k in range(0, 32, 4):
            for i in range(4): g(f"v_accvgpr_read_b32 v{LS(0)+i}, a{32*qt+k+i}")
            for i in range(4): g(f"v_mul_f32 v{LS(0)+i}, v{LS(0)+i}, v{f+qt}")
            for i in range(4): g(f"v_accvgpr_write_b32 a{32*qt+k+i}, v{LS(0)+i}")
    for it in softmax_items(par): play(g, it)
    g("s_nop 15")
    g("s_setpc_b64 s[86:87]")

def tail(g, cfg, smrest, cc):
    for it in vfrag_reads(31): play(g, it)
    for it in smrest: play(g, it)
    for it in cc[0]: play(g, it)
    g.wait_vm("non")
    g.label("L_cnt")
    g(f"v_readfirstlane_b32 s{sT1}, v{vFL}\nv_readfirstlane_b32 s{sNON}, v{vFL+1}\ns_cmp_ge_u32 s{sT1}, 32\ns_cbranch_scc0 L_cntspin")
    g.label("L_cntok")
    g("s_nop 1")
    for it in cc[1] + cc[2]: play(g, it)
    inv = [20, 22, 24, 26]
    g.wait_all(vm=False, lg=True)
    g("s_barrier")
    for qt in range(4): g(f"v_rcp_f32 v{inv[qt]}, v{vL+qt}")
    g(f"v_mov_b32 v{vNON}, s{sNON}")
    stamp(g, cfg, "attn_end")
    def pk(f): return (160 + 4 * f) if f < 8 else (96 + 4 * (f - 8))
    def ostore(r, f):
        if f % 4 == 0 and f: r(f"s_add_u32 s{sST}, s{sST}, 4096")
        r.vmem(f"buffer_store_dwordx4 v[{pk(f)}:{pk(f)+3}], v{vOL}, s[{SWS}:{SWS+3}], s{sST} offen offset:{1024*(f%4)} sc1", f"st{f//8}")
    def norm(f):
        r = Rec()
        qt, s = f // 4, f % 4
        src = O(qt, 2 * s)
        tmp = 128 + 8 * (f % 4)
        for i in range(8): r(f"v_accvgpr_read_b32 v{tmp+i}, a{src+i}")
        if f < cfg.npk:
            for i in range(8): r(f"v_mul_f32 v{tmp+i}, v{tmp+i}, v{inv[qt]}")
        else:
            for i in range(0, 8, 2): r(f"v_pk_mul_f32 v[{tmp+i}:{tmp+i+1}], v[{tmp+i}:{tmp+i+1}], v[{inv[qt]}:{inv[qt]+1}] op_sel_hi:[1,0]")
        for i in range(0, 8, 2): r(f"v_cvt_pk_bf16_f32 v{pk(f)+i//2}, v{tmp+i}, v{tmp+i+1}")
        if f < 8: ostore(r, f)
        return r.items
    def flag(r, ph):
        r.wv(f"st{ph}")
        r.items.append(("v", f"s_mov_b64 exec, 1\nbuffer_store_dword v{vNON}, v{vZ}, s[{SWS}:{SWS+3}], s{sFO} offen offset:{4*ph}", "flag"))
        r.items.append(("v", f"buffer_store_dword v{vNON}, v{vZ}, s[{SWS}:{SWS+3}], s{sFO} offen offset:{128+4*ph} sc1\ns_mov_b64 exec, -1", "flag"))
    mf = pv_mfmas(cfg, 1, border=True)
    nm = [it for f in range(8) for it in norm(f)]
    k = 0
    for i, m in enumerate(mf):
        g(m)
        if i >= 9:
            for it in nm[k:k + cfg.nper]: play(g, it)
            k += cfg.nper
    for it in nm[k:]: play(g, it)
    stamp(g, cfg, "storedA", wait=True)
    for f in range(8, 16):
        for it in norm(f): play(g, it)
    g.wait_vm("W11")
    g("s_barrier")
    for st in range(12, 24):
        if st == cfg.fa_st:
            r = Rec(); flag(r, 0)
            for it in r.items: play(g, it)
            stamp(g, cfg, "ost_done", wait=True)
        for it in wo_read(st): play(g, it)
    if cfg.fa_st >= 24:
        r = Rec(); flag(r, 0)
        for it in r.items: play(g, it)
        stamp(g, cfg, "ost_done", wait=True)
    g(f"v_mov_b32 v{vBR}, v{vOL}\nv_add_u32 v{vBR+1}, {64*K}, v{vOL}\nv_add_u32 v{vBR+2}, {128*K}, v{vOL}")
    def apoll(r, tag):
        r.vmem(f"buffer_load_dword v{vFL+1}, v{vFA}, s[{SWS}:{SWS+3}], s{sFC1} offen sc1", tag)
    def acheck(r, tag):
        r.wv(tag)
        r.atom(f"v_cmp_eq_u32 vcc, v{vNON}, v{vFL+1}\ns_lshr_b32 s{sRDY}, vcc_lo, 8\ns_or_b32 s{sRDY}, s{sRDY}, vcc_lo")
    for tau in range(12, 16):
        if tau == cfg.ap_tau: apoll(g, "ap0")
        wo_dma(g, tau)
    if cfg.ap_tau >= 16: apoll(g, "ap0")
    g.wait_all(vm=False, lg=True)
    g("s_barrier")
    stamp(g, cfg, "wo_done")
    r = Rec(); acheck(r, "ap0")
    for it in r.items: play(g, it)
    UNITS = {"a": [(0, 1), (0, 2), (0, 3), (1, 1), (1, 2), (1, 3), (0, 0), (1, 0)],
             "b": [(0, 1), (0, 2), (0, 3), (0, 0), (1, 1), (1, 2), (1, 3), (1, 0)]}[cfg.uord]
    RING = [(128 * K, 144 * K)] + [(TP[f"K{j}"], TP[f"V{j}"]) for j in (12, 14, 13, 15)]
    def o_dma(rec, u):
        ph, d = UNITS[u]
        rec.atom(f"""s_add_u32 s{sT2}, s{sOWN}, {d}
        s_and_b32 s{sT3}, s{sT2}, 2
        s_lshl_b32 s{sT3}, {0x11 << ph}, s{sT3}""")
        rec.atom(f"""s_andn2_b32 s{sT4}, s{sT3}, s{sRDY}
        s_cbranch_scc1 L_poll{u}
        L_ok{u}:""")
        if u == 0: stamp(g, cfg, "poll_ok", wait=True)
        rec.atom(f"""s_and_b32 s{sT3}, s{sT2}, 2
        s_lshl_b32 s{sT3}, s{sT3}, 13
        s_and_b32 s{sT2}, s{sT2}, 1""")
        rec.atom(f"""s_lshl_b32 s{sT2}, s{sT2}, 12
        s_add_u32 s{sT2}, s{sT2}, s{sT3}
        s_add_u32 s{sT2}, s{sT2}, {ph * 8192}""")
        for grp in range(2):
            rec(f"s_add_u32 m0, s{sW4K}, {RING[u % 5][grp]}")
            rec(f"s_add_u32 s{sT4}, s{sT2}, s{(sOB, sOKV)[grp]}")
            dma_group(rec, SWS, [vOL] * 4, sT4, f"o{u}", " sc1")
    class Direct:
        def __init__(s, g): s.g = g
        def __call__(s, x): s.g(x)
        def atom(s, x): s.g(x)
        def vmem(s, x, t): s.g.vmem(x, t)
    NBUF = 10
    BF = [256 + 64 + 4 * i for i in range(NBUF)]
    accs = {}
    rot = 0
    for u, (ph, d) in enumerate(UNITS):
        if d == 0: accs[u] = 144 + 8 * ph
        else: accs[u] = 128 + 8 * (rot % 2); rot += 1
    nfr = 256
    def b_read(idx):
        u, st = idx // 32, idx % 32
        pos = RING[u % 5][st // 16] + (st % 16) * 1024
        a = pos // (64 * K)
        return ("d", f"ds_read_b128 {rr(BF[idx % NBUF],4)}, v{vBR+a} offset:{pos - a*64*K}", f"b{idx}")
    o_dma(Direct(g), 0); o_dma(Direct(g), 1)
    for f in range(8, 8 + cfg.nb_pre): ostore(g, f)
    AHEAD = NBUF - 2
    BARPOS = 32 - AHEAD
    MSG = [160 + 4 * i for i in range(8)] + [64]
    for q in MSG: g(f"v_mov_b32 v{q+3}, v{vNON}")
    g.wait_vm("o0")
    g.wait_all(vm=False, lg=True)
    g("s_barrier")
    for idx in range(AHEAD): play(g, b_read(idx))
    g.wait_lg("b1")
    def slot(quads, p, k): return quads[3 * p + k // 3] + k % 3
    def ppack(u):
        ph, d = UNITS[u]; p = d - 1
        r = Rec()
        for k in range(4): r(f"v_cvt_pk_bf16_f32 v{slot(MSG, p, 4*ph+k)}, v{accs[u]+2*k}, v{accs[u]+2*k+1}")
        if ph == 1:
            r(f"s_movk_i32 s{sT1}, {p * 3072}")
            for k in range(3):
                q = MSG[3 * p + k]
                r.vmem(f"buffer_store_dwordx4 v[{q}:{q+3}], v{vOL}, s[{SZ}:{SZ+3}], s{sT1} offen offset:{1024*k} sc1", f"ps{p}")
        return r.items
    PL = [68 + 4 * i for i in range(9)]
    def pload(r, p):
        r(f"s_add_u32 s{sT0}, s{sKG}, {3 - p}\ns_and_b32 s{sT0}, s{sT0}, 3\ns_mul_i32 s{sT0}, s{sT0}, {4 * 9216}\ns_add_u32 s{sT0}, s{sT0}, s{sPB}\ns_add_u32 s{sT0}, s{sT0}, {p * 3072}")
        for k in range(3):
            q = PL[3 * p + k]
            r.vmem(f"buffer_load_dwordx4 v[{q}:{q+3}], v{vOL}, s[{SWS}:{SWS+3}], s{sT0} offen offset:{1024*k} sc1", f"pl{p}")
    firstB = [u for u, x in enumerate(UNITS) if x[0] == 1][0]
    req = {u: u - 2 for u in range(2, 8)}
    req[firstB] = firstB - cfg.blead
    for u in range(8):
        stamp(g, cfg, f"u{u}", wait=True)
        mf = []; streams = []
        for st in range(32):
            idx = 32 * u + st
            for nt in range(2):
                d = vr(accs[u] + 4 * nt, 4)
                mf.append(f"{MF} {d}, {rr(WOF(st,nt),4)}, {rr(BF[idx % NBUF],4)}, {'0' if st == 0 else d}")
            if idx + AHEAD < nfr: streams.append(([b_read(idx + AHEAD)], 2 * st, 2 * st))
            if st % 2 == 1 and idx + 2 < nfr: streams.append(([("wl", (f"b{idx+2}",), None)], 2 * st + 1, 2 * st + 1))
            if st == BARPOS - 1 and u < 7:
                streams.append(([("wv", (f"o{u+1}",), None), ("i", "s_barrier", None)], 2 * st + 1, 2 * st + 1))
        if u >= 1 and UNITS[u - 1][1] != 0: streams.append((ppack(u - 1), 5, 22, 40))
        mine = [c for c in range(2, 8) if req[c] == u]
        lo = 2
        if u == cfg.fb_u:
            r = Rec(); flag(r, 1)
            a = r.items
            streams.append(([a[0], ("v2", a[1][1] + "\n" + a[2][1], "flag")], cfg.fb_g, cfg.fb_g))
        assert (req[firstB], cfg.ac_g) > (cfg.fb_u, cfg.fb_g) and (req[firstB], cfg.ac_g) > (cfg.ap_u, cfg.ap_g)
        side = []
        if u == 0:
            its = []
            for st in range(24, 32): its += wo_read(st)
            streams.append((its, 0, 38))
            r = Rec()
            for f in range(8 + cfg.nb_pre, 16): ostore(r, f)
            side += r.items
        if u == cfg.ap_u:
            r = Rec(); apoll(r, "ap1"); streams.append((r.items, cfg.ap_g, cfg.ap_g))
        if firstB in mine:
            assert mine[0] == firstB
            r = Rec(); acheck(r, "ap1"); streams.append((r.items, cfg.ac_g, cfg.ac_g))
            lo = cfg.ac_g + 1
        for c in mine:
            r = Rec(); o_dma(r, c); side += r.items
        hi = 62 if (u + 1) not in mine else None
        if hi is None:
            r = Rec(); o_dma_len = len(side) // len(mine)
            streams.append((side[:o_dma_len], lo, min(lo + 30, 2 * BARPOS - 3), 60))
            streams.append((side[o_dma_len:], min(lo + 31, 2 * BARPOS - 2), 63, 60))
        else:
            streams.append((side, lo, 62, 40))
        if u == 7:
            r = Rec()
            r(f"v_lshlrev_b32 v5, 10, v2\nv_lshl_add_u32 v5, v3, 4, v5")
            pload(r, 0); pload(r, 1); pload(r, 2); streams.append((r.items, cfg.pl_at, 62, 40))
        emit_block(g, mf, streams, name=f"u{u}", dma_gap=cfg.tgap)
    stamp(g, cfg, "gemm_done", wait=True)
    g.label("L_pp")
    g("s_waitcnt vmcnt(0)")
    t = [q + 3 for q in PL]
    g(f"v_xor_b32 v10, v{vNON}, v{t[0]}")
    for i in range(1, 9, 2):
        g(f"v_xor_b32 v11, v{vNON}, v{t[i]}\nv_xor_b32 v12, v{vNON}, v{t[i+1]}\nv_or3_b32 v10, v10, v11, v12")
    g("v_cmp_ne_u32 vcc, 0, v10\ns_cbranch_vccnz L_ppspin")
    g.label("L_pp_ok")
    g.vm = []
    stamp(g, cfg, "poll2_ok", wait=True)
    for p in range(3):
        for k in range(8):
            q = slot(PL, p, k)
            g(f"v_lshlrev_b32 v{104+2*k}, 16, v{q}\nv_and_b32 v{105+2*k}, 0xffff0000, v{q}")
        for i in range(16): g(f"v_add_f32 v{144+i}, v{144+i}, v{104+i}")
    for i in range(8): g(f"v_cvt_pk_bf16_f32 v{128+i}, v{144+2*i}, v{145+2*i}")
    global PPSPIN
    r = Rec()
    for p in range(3): pload(r, p)
    PPSPIN = [it[1] for it in r.items]
    g(f"s_add_u32 s{sT0}, s{sOUTB}, 32768")
    g(f"buffer_store_dwordx4 v[128:131], v5, s[{SOUT}:{SOUT+3}], s{sOUTB} offen {cfg.outfl}")
    g(f"buffer_store_dwordx4 v[132:135], v5, s[{SOUT}:{SOUT+3}], s{sT0} offen {cfg.outfl}")
    if cfg.diag:
        g("s_waitcnt vmcnt(0)")
        stamp(g, cfg, "end", wait=True)
        stamp(g, cfg, "x", wait=True, record=False)
        g(f"s_lshl_b32 s{sT0}, s2, 2\ns_add_u32 s{sT0}, s{sT0}, s{sWAVE}\ns_lshl_b32 s{sT0}, s{sT0}, 8\ns_add_u32 s{sT0}, s{sT0}, {WS_STAMP}")
        g(f"v_lshlrev_b32 v10, 2, v{vLANE}")
        g(f"buffer_store_dword v{vST}, v10, s[{SWS}:{SWS+3}], s{sT0} offen")
    g.label("L_end")
    g("s_endpgm")

def spins(g, cfg):
    g.label("L_cntspin")
    g(f"""
    s_add_u32 s{sSPIN}, s{sSPIN}, 1
    s_cmp_gt_u32 s{sSPIN}, {SPIN_MAX}
    s_cbranch_scc1 L_cntok
    s_sleep 2
    buffer_load_dwordx2 v[{vFL}:{vFL+1}], v{vZ}, s[{SDBG}:{SDBG+3}], s{sCN} offen sc1
    s_waitcnt vmcnt(0)
    s_branch L_cnt
    """)
    g.label("L_ppspin")
    g(f"s_add_u32 s{sSPIN}, s{sSPIN}, 1\ns_cmp_gt_u32 s{sSPIN}, {SPIN_MAX}\ns_cbranch_scc1 L_pp_ok")
    for l in PPSPIN: g(l)
    g("s_branch L_pp")
    for u in range(8):
        g.label(f"L_poll{u}")
        g(f"""
        buffer_load_dword v{vFL}, v{vFA}, s[{SWS}:{SWS+3}], s{sFC1} offen {cfg.pfl.replace('_', ' ')}
        s_add_u32 s{sSPIN}, s{sSPIN}, 1
        s_waitcnt vmcnt(0)
        v_cmp_eq_u32 vcc, v{vNON}, v{vFL}
        s_cmp_gt_u32 s{sSPIN}, {SPIN_MAX}
        s_cbranch_scc1 L_ok{u}
        s_lshr_b32 s{sRDY}, vcc_lo, 8
        s_or_b32 s{sRDY}, s{sRDY}, vcc_lo
        s_andn2_b32 s{sT4}, s{sT3}, s{sRDY}
        s_cbranch_scc0 L_ok{u}
        s_branch L_poll{u}
        """)

Cfg.npk = 6
Cfg.wnt = 0
Cfg.zfl = 'sc1'
Cfg.ofl = 'sc1'
Cfg.ctouch = True
Cfg.noz = False
Cfg.dfl = 'sc1'
Cfg.ffl = 'sc1'
Cfg.pfl = 'sc1'
Cfg.flag_early = False
Cfg.w0 = 47
Cfg.w1 = 49
Cfg.w2 = 53
Cfg.cblk = [1, 23, 45]
Cfg.nper = 7
Cfg.uord = 'b'
Cfg.blead = 2
Cfg.fb_u = 1
Cfg.fb_g = 40
Cfg.ap_u = 2
Cfg.ap_g = 2
Cfg.ac_g = 30
Cfg.fa_st = 24
Cfg.ap_tau = 14
Cfg.nb_pre = 8
Cfg.v15 = 0
Cfg.pl_at = 20
Cfg.tgap = 3
Cfg.outfl = ''
Cfg.bydl = True
Cfg.ring5 = False
Cfg.margin = 5
Cfg.first = 0
Cfg.fast = 2.0
Cfg.knee = 99
Cfg.wrounds = 0
Cfg.wfirst = 49
Cfg.zfirst = 5
Cfg.zstep = 2
Cfg.sp31 = 30
Cfg.pl2_at = 36

def build(cfg):
    g = Gen()
    plan, wvis, wread = make_plan(cfg)
    print("plan:", " ".join(f"{b}:{'+'.join(plan[b])}" for b in sorted(plan)))
    setup(g, cfg)
    late = qproj(g, cfg)
    smrest, ck = attention(g, cfg, late, plan, wvis, wread)
    tail(g, cfg, smrest, ck)
    stubs(g, cfg)
    spins(g, cfg)
    fallback(g, 0); fallback(g, 1)
    g.label("L_textend")
    g(f".if (L_textend - L_code0) < {16384 * (len(cfg.cblk) + 1)}\n.error \"code touch range\"\n.endif")
    errs = check_hazards(g.lines, "lin")
    for e in errs: print("HAZARD", e, file=sys.stderr)
    src = (HEADER + (("; STAMPS " + " ".join(STAMPS) + "\n") if cfg.diag else "") + "; @launch grid=(256,1,1) block=(256,1,1) lds=163840\n"
        '.amdgcn_target "amdgcn-amd-amdhsa--gfx950"\n.text\n'
        f".globl {KNAME}\n.p2align 8\n.type {KNAME},@function\n{KNAME}:\n"
        + g.text() +
        '.section .rodata,"a"\n.p2align 6\n'
        f".amdhsa_kernel {KNAME}\n"
        "  .amdhsa_next_free_vgpr 512\n  .amdhsa_next_free_sgpr 102\n  .amdhsa_accum_offset 256\n"
        "  .amdhsa_group_segment_fixed_size 0\n  .amdhsa_kernarg_size 64\n  .amdhsa_user_sgpr_count 2\n"
        "  .amdhsa_user_sgpr_kernarg_segment_ptr 1\n  .amdhsa_system_sgpr_workgroup_id_x 1\n"
        ".end_amdhsa_kernel\n")
    return src, errs

if __name__ == "__main__":
    cfg = Cfg()
    out = sys.argv[1]
    for kv in sys.argv[2:]:
        k, v = kv.split("=")
        cur = getattr(cfg, k)
        setattr(Cfg, k, bool(eval(v)) if isinstance(cur, bool) else (v if isinstance(cur, str) else type(cur)(eval(v))))
    src, errs = build(cfg)
    assert not errs
    open(out, "w").write(src)
    print(" ".join(f"{n}:{c}" for n, c in REPORT))
    print(f"wrote {out}: {src.count(chr(10))} lines, {len(errs)} hazard findings")
```

```python
import sys, math, struct
from core import *
from sched import schedule, gap_report

KNAME = "standalone__mha_block_cached__near_ridge_kernel"
HEADER = """; Kernarg layout for this problem (64 bytes, ptrs only, base s[0:1]):
"""
K = 1024
XSL = [0, 64 * K]
WSL = [32, 40, 96, 104, 48, 56, 112, 120] * 2
WB = [32 * K, 96 * K]
TP = {}

sWAVE = 3
SX, SWQ, SK, SV, SWO, SWS, SOUT, SDBG, SA, SB = 4, 8, 12, 16, 20, 24, 28, 32, 36, 40
sSOFFA, sSOFFB, sLDSA, sDB, sJ, sKD, sVD, sSTEP = 44, 45, 46, 47, 48, 49, 50, 51
sB, sH, sKG, sRB, sCB, sRW = 52, 53, 54, 55, 56, 57
sT0, sT1, sT2, sT3 = 58, 59, 60, 61
sTHR, sC4K, sC4V = 62, 63, 80
sC16K, sSPIN, sOWN, sPB, sFO, sFC1, sFC2, sOUTB = 66, 67, 68, 69, 70, 76, 77, 78
sW4K = 81
sPC = 44
SZ = 72
sNON, sOKV = 64, 65
sXS, sXL = 82, 83
sSC = 84
sOB, sST = 88, 89
sSTAMP, sSTC = 90, 92
sROT, sT4, sWS_, sWL, sRDY, sCN, sW8K = 94, 95, 96, 97, 98, 99, 100

vLANE = 1
vKA = 16
vVA = 20
vOA = 32
vOB = 36
vOW = 40
vRO = 40
vL = 44
vCK, vST = 48, 49
vWO = 50
vT = 52
NT = 8
vONE = 60
vSEN = 28
vWR = 13
vOL, vFL, vFA, vZ, vCT, vNON = 4, 38, 51, 50, 6, 8
vBR = 28
def P(par, qt): return 64 + 16 * par + 4 * qt
def NEGM(qt): return 96 + 4 * qt
def LS(qt): return 112 + 4 * qt
def S(par, qt): return 128 + 32 * par + 8 * qt
def Q(qt, s): return 192 + 16 * qt + 4 * s
def QACC(qt, tile): return 128 + 32 * qt + 4 * tile
def O(qt, t): return 32 * qt + 4 * t
def KF(kt, s): return 128 + 16 * kt + 4 * s
def VF(t): return 160 + 4 * t
def WF(st, tile): return 128 + 32 * st + 4 * tile
XH = [256, 288, 320, 352, 448, 480, 64, 96]
def XF(c, ks, qt): return XH[c] + 16 * ks + 4 * qt

WS_PART = 16 * K * K
WS_FLAGS = 28 * K * K
WS_STAMP = 32 * K * K
WS_QDUMP = 64 * K * K
FS = 256
SPIN_MAX = 400000
MF = "v_mfma_f32_16x16x32_bf16"
def f32bits(x): return struct.unpack("<I", struct.pack("<f", x))[0]

class Cfg:
    diag = 0
    qdump = False
    thr = 16384.0
    nt_kv = True
    rot = True
    tlb = True
    wotouch = True
    qs = "b"
    pv_b = True
    qk_b = False
    sm_split = 24
    lead = 2
    dloop = False
    zmode = "loop"

STAMPS = []
def stamp(g, cfg, name, first=False, rep=1, record=True, wait=False):
    if not cfg.diag:
        return
    if cfg.dloop and name not in ("start", "x", "blk", "end"):
        return
    if not cfg.dloop and name == "blk":
        return
    if record:
        STAMPS.extend([name] if rep == 1 else [f"{name}{i}" for i in range(rep)])
    if first:
        g(f"s_mov_b64 s[{sSTC}:{sSTC+1}], 1")
    else:
        if wait: g("s_waitcnt lgkmcnt(0)")
        g(f"s_mov_b64 exec, s[{sSTC}:{sSTC+1}]\nv_mov_b32 v{vST}, s{sSTAMP}\ns_mov_b64 exec, -1\ns_lshl_b64 s[{sSTC}:{sSTC+1}], s[{sSTC}:{sSTC+1}], 1")
    g(f"{'s_memrealtime' if cfg.diag == 1 else 's_memtime'} s[{sSTAMP}:{sSTAMP+1}]")

class Rec(Gen):
    def __init__(self):
        super().__init__(); self.items = []
    def __call__(self, s):
        for l in s.strip("\n").split("\n"):
            l = l.strip()
            if l: self.items.append(("i", l, None))
    def vmem(self, s, tag=None): self.items.append(("v", s, tag))
    def ds(self, s, tag=None): self.items.append(("d", s, tag))
    def atom(self, s): self.items.append(("i", s.strip(), None))
    def wv(self, *tags): self.items.append(("wv", tags, None))
    def wl(self, *tags): self.items.append(("wl", tags, None))

def play(g, it):
    k, s, tag = it
    if k == "i": g(s)
    elif k == "v": g.vmem(s, tag)
    elif k == "v2": g.vmem(s, tag); g.vm.append(tag)
    elif k == "wv": g.wait_vm(*s)
    elif k == "wl": g.wait_lg(*s)
    else: g.ds(s, tag)

REPORT = []
SSTATE = {"since_dma": 99}
def emit_block(g, mfmas, streams, name=None, dma_gap=4):
    ss = []
    for t in streams:
        d = dict(items=t[0], first=t[1], last=t[2])
        if len(t) > 3: d["ahead"] = t[3]
        ss.append(d)
    gaps = schedule(len(mfmas), ss, dma_gap=dma_gap, state=SSTATE)
    if name: REPORT.append((name, gap_report(mfmas, gaps)))
    for m, gap in zip(mfmas, gaps):
        g(m)
        for it in gap:
            play(g, it)

def srd(g, d, lo, hi, size, off=None):
    if off is None:
        g(f"s_mov_b32 s{d}, s{lo}\ns_mov_b32 s{d+1}, s{hi}")
    else:
        g(f"s_add_u32 s{d}, s{lo}, {off}\ns_addc_u32 s{d+1}, s{hi}, 0")
    g(f"s_mov_b32 s{d+2}, {size}\ns_mov_b32 s{d+3}, 0x20000")

def dma_group(g, srdreg, vregs, soff, tag, fl=""):
    for n in range(4):
        g.vmem(f"buffer_load_dwordx4 v{vregs[n]}, s[{srdreg}:{srdreg+3}], s{soff} offen offset:{1024*n}{fl} lds", tag)

def setup(g, cfg):
    g(f"""
    s_cmp_ge_u32 s2, 256
    s_cbranch_scc1 L_end
    s_load_dwordx16 s[64:79], s[0:1], 0
    """)
    stamp(g, cfg, "start", first=True)
    g(f"""
    v_lshrrev_b32 v2, 6, v0
    v_and_b32 v{vLANE}, 63, v0
    v_readfirstlane_b32 s{sWAVE}, v2
    s_bfe_u32 s{sT0}, s2, 0x20003
    s_lshr_b32 s{sT1}, s2, 5
    s_and_b32 s{sB}, s2, 1
    s_lshl_b32 s{sB}, s{sB}, 2
    s_add_u32 s{sB}, s{sB}, s{sT0}
    s_bfe_u32 s{sKG}, s2, 0x20001
    s_lshl_b32 s{sH}, s{sKG}, 3
    s_add_u32 s{sH}, s{sH}, s{sT1}
    s_and_b32 s{sRB}, s{sT1}, 1
    s_lshr_b32 s{sCB}, s{sT1}, 1
    s_lshl_b32 s{sT0}, s{sT0}, 1
    s_add_u32 s{sRW}, s{sT0}, s{sRB}
    s_add_u32 s{sROT}, s{sT0}, s{sT1}
    s_and_b32 s{sROT}, s{sROT}, 7
    s_lshl_b32 s{sW4K}, s{sWAVE}, 12
    s_lshl_b32 s{sW8K}, s{sWAVE}, 13
    """)
    if not cfg.rot:
        g(f"s_mov_b32 s{sROT}, 0\ns_mov_b32 s{sRW}, 0")
    g(f"""
    v_and_b32 v2, 15, v{vLANE}
    v_lshrrev_b32 v3, 4, v{vLANE}
    v_lshrrev_b32 v5, 3, v{vLANE}
    v_and_b32 v6, 7, v{vLANE}
    v_bfe_u32 v7, v{vLANE}, 2, 2
    v_xor_b32 v8, v6, v3
    v_lshlrev_b32 v8, 4, v8
    v_lshl_add_u32 v{vRO}, v5, 10, v8
    v_xor_b32 v8, 64, v{vRO}
    v_add_u32 v{vRO+1}, 7168, v8
    v_add_u32 v{vRO+2}, {2*7168}, v{vRO}
    v_add_u32 v{vRO+3}, {3*7168}, v8
    v_lshlrev_b32 v8, 2, v3
    v_xor_b32 v8, v2, v8
    v_lshlrev_b32 v9, 4, v8
    v_lshl_add_u32 v{vWO}, v3, 13, v9
    v_add_u32 v{vWO+1}, 31744, v{vWO}
    s_lshl_b32 s{sXS}, s{sB}, 18
    s_lshl_b32 s{sT0}, s{sWAVE}, 16
    s_add_u32 s{sXS}, s{sXS}, s{sT0}
    s_lshl_b32 s{sWS_}, s{sH}, 8
    s_add_u32 s{sWS_}, s{sWS_}, s{sT0}
    s_lshl_b32 s{sWL}, s{sWAVE}, 11
    s_lshl_b32 s{sXL}, s{sROT}, 19
    s_waitcnt lgkmcnt(0)
    """)
    srd(g, SWQ, 70, 71, 4 * K * K)
    srd(g, SX, 64, 65, 2 * K * K)

def setup_late(g, cfg):
    g(f"s_lshl_b32 s{sT0}, s{sB}, 5\ns_add_u32 s{sT0}, s{sT0}, s{sH}\ns_lshl_b32 s{sT1}, s{sT0}, 18")
    srd(g, SK, 66, 67, 256 * K, f"s{sT1}")
    srd(g, SV, 68, 69, 256 * K, f"s{sT1}")
    srd(g, SWO, 72, 73, 4 * K * K)
    srd(g, SWS, 78, 79, 128 * K * K)
    srd(g, SOUT, 74, 75, 2 * K * K)
    srd(g, SDBG, 76, 77, 256)
    g(f"""
    s_lshl_b32 s{sST}, s{sT0}, 16
    s_lshl_b32 s{sT1}, s{sWAVE}, 14
    s_add_u32 s{sST}, s{sST}, s{sT1}
    s_lshl_b32 s{sT0}, s{sT0}, 2
    s_add_u32 s{sT0}, s{sT0}, s{sWAVE}
    s_mul_i32 s{sT0}, s{sT0}, {FS}
    s_add_u32 s{sFO}, s{sT0}, {WS_FLAGS}
    s_add_u32 s{sOWN}, s{sKG}, s{sCB}
    s_and_b32 s{sOWN}, s{sOWN}, 3
    s_lshl_b32 s{sT0}, s{sB}, 1
    s_add_u32 s{sT0}, s{sT0}, s{sRB}
    s_lshl_b32 s{sT0}, s{sT0}, 2
    s_add_u32 s{sT0}, s{sT0}, s{sCB}
    s_mul_i32 s{sPB}, s{sT0}, {16 * 9216}
    s_mul_i32 s{sT1}, s{sWAVE}, 9216
    s_add_u32 s{sPB}, s{sPB}, s{sT1}
    s_add_u32 s{sPB}, s{sPB}, {WS_PART}
    s_mul_i32 s{sT1}, s{sKG}, {4 * 9216}
    s_add_u32 s{sT1}, s{sT1}, s{sPB}
    s_add_u32 s{SZ}, s{SWS}, s{sT1}
    s_addc_u32 s{SZ+1}, s{SWS+1}, 0
    s_mov_b32 s{SZ+2}, 9216
    s_mov_b32 s{SZ+3}, 0x20000
    v_lshlrev_b32 v4, 4, v{vLANE}
    v_mov_b32 v11, 0
    """)
    g(f"""
    s_memrealtime s[46:47]
    s_lshl_b32 s{sCN}, s{sB}, 5
    v_mov_b32 v14, 1
    s_waitcnt lgkmcnt(0)
    v_mov_b32 v15, s46
    s_cmp_eq_u32 s{sWAVE}, 2
    s_cselect_b32 s{sT2}, s{sCN}, 0x1000
    s_mov_b64 exec, 1
    """)
    g.vmem(f"buffer_atomic_add_x2 v[14:15], v11, s[{SDBG}:{SDBG+3}], s{sT2} offen sc1", "cnt")
    if cfg.tlb:
        g(f"s_lshl_b32 s{sT2}, s{sB}, 18\ns_lshl_b32 s{sT3}, s{sKG}, 20")
        g.vmem(f"buffer_load_dword v{vT+4}, v11, s[{SK}:{SK+3}], 0 offen nt", "tlb")
        g.vmem(f"buffer_load_dword v{vT+5}, v11, s[{SV}:{SV+3}], 0 offen nt", "tlb")
        g.vmem(f"buffer_load_dword v{vT+6}, v11, s[{SOUT}:{SOUT+3}], s{sT2} offen nt", "tlb")
        g.vmem(f"buffer_load_dword v{vT+7}, v11, s[{SWO}:{SWO+3}], s{sT3} offen nt", "tlb")
    g("s_mov_b64 exec, -1")
    g(f"""
    v_xor_b32 v8, v2, v3
    v_lshlrev_b32 v8, 4, v8
    v_lshl_add_u32 v{vOA}, v3, 8, v8
    v_xor_b32 v{vOA+1}, 64, v{vOA}
    v_xor_b32 v{vOA+2}, 0x80, v{vOA}
    v_xor_b32 v{vOA+3}, 0xc0, v{vOA}
    v_lshlrev_b32 v8, 1, v3
    v_xor_b32 v8, v2, v8
    v_lshlrev_b32 v8, 4, v8
    v_lshl_add_u32 v{vOB}, v3, 8, v8
    v_xor_b32 v{vOB+1}, 0x80, v{vOB}
    """)
    g(f"""
    v_and_b32 v12, 3, v{vLANE}
    v_lshl_add_u32 v13, v3, 3, v7
    v_lshlrev_b32 v13, 8, v13
    v_lshl_add_u32 v13, v7, 6, v13
    v_lshl_add_u32 v13, v12, 4, v13
    v_add_u32 v{vVA}, {WB[0]}, v13
    v_add_u32 v{vVA+4}, {WB[1]}, v13
    """)
    for s in range(1, 4):
        g(f"v_xor_b32 v{vVA+s}, {s<<6}, v{vVA}\nv_xor_b32 v{vVA+4+s}, {s<<6}, v{vVA+4}")
    g(f"""
    v_lshrrev_b32 v13, 1, v2
    v_xor_b32 v13, v13, v3
    v_lshlrev_b32 v13, 4, v13
    v_lshl_add_u32 v13, v2, 7, v13
    v_add_u32 v13, s{sW8K}, v13
    v_add_u32 v{vKA}, {XSL[0]}, v13
    v_add_u32 v{vKA+2}, {XSL[1]}, v13
    v_xor_b32 v{vKA+1}, 64, v{vKA}
    v_xor_b32 v{vKA+3}, 64, v{vKA+2}
    s_mov_b32 s{sTHR}, {f32bits(cfg.thr):#x}
    s_mov_b32 s{sSC}, {f32bits(math.log2(math.e) / math.sqrt(128.0)):#x}
    s_mov_b32 s{sSC+1}, s{sSC}
    """)
    for i in range(4):
        g(f"v_mov_b32 v{vL+i}, 0\nv_mov_b32 v{vONE+i}, 0x3f803f80")

def code_touch(g, cfg, lo, hi, share=True):
    lab = g.newlabel("L_pc") if hasattr(g, "newlabel") else None
    g(f"""s_getpc_b64 s[{sPC}:{sPC+1}]
    {lab}:
    s_add_u32 s{sPC}, s{sPC}, {lo}-{lab}
    s_addc_u32 s{sPC+1}, s{sPC+1}, 0
    s_lshr_b32 s{sT2}, s2, 3
    s_lshl_b32 s{sT2}, s{sT2}, 2
    s_add_u32 s{sT2}, s{sT2}, s{sWAVE}
    s_lshl_b32 s{sT3}, s{sT2}, 7
    v_mov_b32 v{vCT}, s{sT3}
    v_lshlrev_b32 v10, 7, v{vLANE}
    v_add_u32 v10, s{sT2}, v10
    v_lshlrev_b32 v10, 7, v10
    v_cmp_gt_u32 vcc, {hi}-{lo}, v10
    s_and_saveexec_b64 s[86:87], vcc""")
    g.vmem(f"global_load_dword v{vT+3}, v10, s[{sPC}:{sPC+1}]", "ct")
    g("s_mov_b64 exec, -1")

def kaddr_items():
    r = Rec()
    r(f"""
    v_xor_b32 v10, v2, v3
    v_lshlrev_b32 v10, 4, v10
    v_lshl_add_u32 v10, v2, 8, v10
    v_add_u32 v{vKA}, {BASE["K"]}, v10
    """)
    for s in range(1, 4): r(f"v_xor_b32 v{vKA+s}, {s<<6}, v{vKA}")
    return r.items

def vaddr_items():
    r = Rec()
    r(f"""
    v_lshl_add_u32 v10, v3, 2, v7
    v_and_b32 v11, 7, v10
    v_lshlrev_b32 v10, 8, v10
    v_lshl_add_u32 v10, v11, 5, v10
    v_lshl_add_u32 v10, v12, 3, v10
    v_add_u32 v{vVA}, {BASE['V']}, v10
    """)
    for t in range(1, 8): r(f"v_xor_b32 v{vVA+t}, {t<<5}, v{vVA}")
    return r.items

def kv_group(g, cfg, kind, j):
    srdreg, vregs = (SK, [vOA + n for n in range(4)]) if kind == "K" else (SV, [vOB + n % 2 for n in range(4)])
    g(f"s_add_u32 m0, s{sW4K}, {TP[f'{kind}{j}']}\ns_add_u32 s{sT0}, s{sW4K}, {16384 * j}")
    dma_group(g, srdreg, vregs, sT0, f"{kind}{j}", " nt" if cfg.nt_kv else "")

def wo_dma(rec, tau):
    rec(f"s_add_u32 s{sT0}, s{sXS}, {tau * 65536}")
    rec(f"s_add_u32 m0, s{sW4K}, {TP[f'W{tau}']}")
    rec(f"s_and_b32 s{sT0}, s{sT0}, 0xfffff")
    dma_group(rec, SWO, [vOW + n for n in range(4)], sT0, f"W{tau}", " nt" if tau < Cfg.wnt else "")

def load(g, cfg, name):
    if name[0] == "x": x_dma(g, cfg, int(name[1]), "ab".index(name[2]))
    elif name[0] == "w": w_dma(g, cfg, int(name[1:]))
    elif name[0] == "W": wo_dma(g, int(name[1:]))
    elif name[0] == "C":
        k = int(name[1:])
        g.atom(f"s_add_u32 s46, s{sPC}, {k * 16384}\ns_addc_u32 s47, s{sPC+1}, 0")
        g.vmem(f"global_load_dword v5, v{vCT}, s[46:47]", "ct")
    elif name == "N":
        g.vmem(f"buffer_load_dwordx2 v[{vFL}:{vFL+1}], v{vZ}, s[{SDBG}:{SDBG+3}], s{sCN} offen sc1", "non")
        g.vmem(f"buffer_load_dword v5, v{vFA}, s[{SWS}:{SWS+3}], s{sFC1} offen {cfg.pfl}", "pre")
    else: kv_group(g, cfg, name[0], int(name[1:]))

BASE = {"K": 128 * K, "V": 128 * K}
def rebase_items(kind, pos):
    want = 128 * K if pos >= 128 * K else (0 if kind == "K" else 64 * K)
    r = Rec()
    if want != BASE[kind]:
        for i in (range(vKA, vKA + 4) if kind == "K" else range(vVA, vVA + 8)):
            r(f"v_add_u32 v{i}, {(want - BASE[kind]) & 0xffffffff:#x}, v{i}")
        BASE[kind] = want
    return r.items

def x_dma(g, cfg, c, grp):
    if grp == 0:
        g(f"s_add_u32 s{sT4}, s{sROT}, {c}\ns_and_b32 s{sT4}, s{sT4}, 7\ns_lshl_b32 s{sT4}, s{sT4}, 7")
    g(f"s_add_u32 m0, s{sW8K}, {XSL[c % 2] + grp * 4096}")
    g(f"s_add_u32 s{sT4}, s{sT4}, " + (f"s{sXS}" if grp == 0 else "32768"))
    dma_group(g, SX, [vRO + n for n in range(4)], sT4, f"x{c}")

def w_dma(g, cfg, k):
    g(f"s_add_u32 s{sT0}, s{sXL}, {k << 18}\ns_and_b32 s{sT0}, s{sT0}, 0x3fffff")
    g(f"s_add_u32 m0, s{sWL}, {WSL[k] * K}")
    g(f"s_add_u32 s{sT0}, s{sT0}, s{sWS_}")
    for n in range(2):
        g.vmem(f"buffer_load_dwordx4 v{vWO+n}, s[{SWQ}:{SWQ+3}], s{sT0} offen offset:{1024*n} lds", f"w{k}")

def kfrag_reads(i):
    off = TP[f"K{i//2}"] - BASE["K"] + (i % 2) * 8192
    assert 0 <= off < 65536 - 4096
    r = Rec()
    for s in range(4):
        for kt in range(2):
            r.ds(f"ds_read_b128 {ar(KF(kt,s),4)}, v{vKA+s} offset:{off + kt*4096}", f"kf{i}_{s}")
    return r.items

def vfrag_reads(i):
    off = TP[f"V{i//2}"] - BASE["V"] + (i % 2) * 8192
    assert 0 <= off < 65536 - 4096
    r = Rec()
    for t in range(8):
        for hf in range(2):
            r.ds(f"ds_read_b64_tr_b16 {ar(VF(t)+2*hf,2)}, v{vVA+t} offset:{off + hf*4096}", f"vf{i}")
    return r.items

QS = {
 "a": dict(xread=[-1, 0, 2, 3, 5, 6, 8, 9],
           d={-2: "w0 x0a x0b w1 w2 x1a x1b w3", -1: "K0 V0",
              0: "x2a x2b", 1: "w4 w5 x3a", 2: "x3b w6 w8", 3: "x4a x4b", 4: "w7 w9 x5a", 5: "x5b w10 w11", 6: "x6a x6b",
              7: "w12 w13 x7a", 8: "x7b w14 w15", 9: "K1 K2", 10: "V1", 12: "V2", 14: "K3", 16: "V3"}),
 "b": dict(xread=[-1, 0, 2, 3, 5, 6, 8, 9],
           d={-2: "w0 x0a x0b w1 w2 x1a x1b w3",
              0: "x2a x2b", 1: "w4 w5 x3a", 2: "x3b w6 w8", 3: "x4a x4b", 4: "w7 w9 x5a", 5: "x5b w10 w11", 6: "x6a x6b",
              7: "w12 w13 x7a", 8: "x7b w14 w15", 9: "K0 V0", 10: "K1", 12: "V1", 14: "K2", 16: "V2"}),
 "d": dict(xread=[-1, 0, 2, 3, 5, 7, 9, 10],
           d={-2: "w0 x0a x0b w1 w2 x1a x1b w3",
              0: "x2a x2b", 1: "w4 w5 x3a", 2: "x3b w6 w7", 3: "x4a x4b", 4: "z0 x5a", 5: "x5b w8 w9", 6: "z1 x6a",
              7: "x6b w10 w11", 8: "x7a x7b", 9: "w12 w13 z2", 10: "w14 w15 K0", 11: "V0 K1", 13: "V1", 15: "K2", 16: "V2"}),
 "e": dict(xread=[-1, 0, 2, 3, 5, 6, 8, 9],
           d={-2: "w0 x0a x0b w1 w2 x1a x1b w3",
              0: "x2a x2b", 1: "w4 w5 x3a", 2: "x3b w6 w8", 3: "x4a x4b", 4: "w7 w9 x5a", 5: "x5b w10 w11", 6: "x6a x6b",
              7: "w12 w13 x7a", 8: "x7b w14 w15", 9: "z0 z1", 10: "z2 K0", 11: "V0 K1", 13: "V1", 15: "K2", 16: "V2"}),
 "c": dict(xread=[-1, 0, 2, 3, 5, 6, 8, 9],
           d={-2: "w0 x0a x0b w1 w2 x1a x1b w3 w4 w5", -1: "K0 V0",
              0: "x2a x2b", 1: "w6 w7 x3a", 2: "x3b w8 w9", 3: "x4a x4b", 4: "w10 w11 x5a", 5: "x5b w12 w13", 6: "x6a x6b",
              7: "w14 w15 x7a", 8: "x7b", 9: "K1 K2", 10: "V1", 12: "V2", 13: "K3", 15: "V3"}),
}

def make_plan(cfg):
    ring5 = cfg.ring5
    for kind, lo, st in (("K", 0, 128 * K), ("V", 64 * K, 144 * K)):
        n = 0
        for j in range(16):
            if j == 0 or (ring5 and j == 5): TP[f"{kind}{j}"] = st
            else:
                TP[f"{kind}{j}"] = lo + 16 * K * (n % 4); n += 1
    pre = " ".join(QS[cfg.qs]["d"].values()).split()
    units = [f"{k}{j}" for j in range(16) for k in "KV" if f"{k}{j}" not in pre]
    def prev(name):
        kind, j = name[0], int(name[1:])
        c = [i for i in range(j) if TP[f"{kind}{i}"] == TP[name]]
        return c[-1] if c else None
    earliest = {u: (0 if prev(u) is None else 4 * (prev(u) + 1)) for u in units}
    latest = {u: 4 * (int(u[1:]) - (1 if u[0] == "K" else 0)) - cfg.margin for u in units}
    if cfg.bydl: units.sort(key=lambda u: (latest[u], earliest[u]))
    plan = {}
    pos = float(cfg.first)
    n = len(units)
    for i, u in enumerate(units):
        pos = max(pos, earliest[u])
        if pos >= cfg.knee:
            step = min((latest[v] - pos) / (k - i) for k, v in enumerate(units) if k > i) if i + 1 < n else 0
        else:
            step = cfg.fast
        pos = max(pos, earliest[u])
        b = int(pos)
        while b in plan: b += 1
        assert b <= latest[u] + 2, (u, b, latest[u])
        plan[b] = u
        pos += max(step, 1.0)
    if cfg.v15:
        b = [b for b, u in plan.items() if u == "V15"][0]
        del plan[b]; plan[cfg.v15] = "V15"
    plan = {b: [u] for b, u in plan.items()}
    S0, S1 = 128 * K, 144 * K
    wt = [(S0, cfg.w0), (S1, cfg.w1), ("K12", cfg.w2), ("V12", cfg.w2 + 1), ("K13", 57), ("V13", 58), (S0, 60), (S1, 60), ("K12", 61), ("V12", 61),
          ("K14", 62), ("V14", 62), ("K13", None), ("V13", None), ("K15", None), ("V15", None)]
    for tau, (pos, b) in enumerate(wt):
        TP[f"W{tau}"] = pos if isinstance(pos, int) else TP[pos]
        if b is not None: plan.setdefault(b, []).append(f"W{tau}")
    for k, b in enumerate(cfg.cblk): plan.setdefault(b, []).append(f"C{k+1}")
    plan.setdefault(59, []).append("N")
    wvis = {14: ["W0", "W1", "W2", "W3"], 15: ["W4", "W5"]}
    wread = {28: range(0, 4), 29: range(4, 8), 31: range(8, 12)}
    return plan, wvis, wread

def qproj(g, cfg):
    qs = QS[cfg.qs]
    for name in qs["d"][-2].split(): load(g, cfg, name)
    if cfg.ctouch: code_touch(g, cfg, "L_code0", "L_end")
    g.label("L_code0")
    setup_late(g, cfg)
    for name in qs["d"].get(-1, "").split(): load(g, cfg, name)
    xlast = qs["xread"][7]
    free_after = {"K1": qs["xread"][6] + 1, "K2": qs["xread"][6] + 1, "V1": xlast + 1, "V2": xlast + 1, "K3": 9, "V3": 11, "K4": 13, "V4": 15}
    for k in range(8, 16): free_after[f"w{k}"] = k - 8
    for c in range(2, 8): free_after[f"x{c}a"] = free_after[f"x{c}b"] = qs["xread"][c - 2] + 1
    for h in range(-1, 16):
        g.comment(f"---- H({h})")
        if h + 1 <= 15:
            assert f"w{h+1}" not in " ".join(v for kk, v in qs["d"].items() if kk >= max(h, 0)).split()
            g.wait_vm(f"w{h+1}")
        else: g.wait_vm("K0", "K1", "V0")
        if h >= 0: g.wait_all(vm=False, lg=True)
        g("s_barrier")
        stamp(g, cfg, f"H{h}")
        xr = []
        if h in qs["xread"]:
            c = qs["xread"].index(h)
            assert h < 2 * c or c == 0
            assert f"x{c}b" not in " ".join(v for kk, v in qs["d"].items() if kk >= max(h, 0)).split()
            rd = Rec(); rd.wv(f"x{c}")
            for ks in range(2):
                for qt in range(4):
                    rd.ds(f"ds_read_b128 {rr(XF(c,ks,qt),4)}, v{vKA+2*(c%2)+ks} offset:{qt*2048}", f"xr{c}")
            xr = rd.items
        rd = Rec()
        if h + 1 <= 15:
            k = h + 1
            pos = WSL[k] * K
            st = int(pos >= WB[1]); base = WB[st]
            for s in range(4):
                for tb in range(2):
                    for hf in range(2):
                        rd.ds(f"ds_read_b64_tr_b16 {ar(WF(k%2, 2*s+tb)+2*hf,2)}, v{vVA+4*st+s} offset:{pos - base + hf*1024 + tb*8}")
        else:
            rd.items = kfrag_reads(0)
        wr = rd.items
        dm = Rec()
        for name in (qs["d"].get(h, "").split() if h >= 0 else []):
            assert h >= free_after.get(name, 0), name
            load(dm, cfg, name)
        misc = Rec()
        if h == 11: tail_setup(misc, cfg, 0)
        if h == 12: tail_setup(misc, cfg, 1)
        if h == 13: tail_setup(misc, cfg, 2)
        if h == 14:
            assert xlast < 14
            misc.items += kaddr_items()
        if h == 15: misc.items += vaddr_items()
        if h >= 8:
            for i in range(16 * (h - 8), 16 * (h - 7)): misc(f"v_accvgpr_write_b32 a{i}, 0")
        if h == -1:
            for it in wr + xr: play(g, it)
            continue
        c = h // 2
        order = [(qt, tile) for tile in range(8) for qt in range(4)]
        if h == 15: order = [(qt, tile) for qt in range(3, -1, -1) for tile in range(7, -1, -1)]
        mf = []
        for qt, tile in order:
            cc = "0" if h == 0 else vr(QACC(qt, tile), 4)
            mf.append(f"{MF} {vr(QACC(qt,tile),4)}, {ar(WF(h%2,tile),4)}, {rr(XF(c, h%2, qt),4)}, {cc}")
        emit_block(g, mf, [(dm.items, 0, 31, 40), (wr, 0, 20), (xr, 20, 27), (misc.items, 0, 31)], name=f"H{h}")
    return [n for n in qs["d"].get(16, "").split()]

def softmax_items(par):
    r = Rec()
    def T(i): return vT + (i % NT)
    pend = []
    for pi in range(16):
        qt, k = pi // 4, 2 * (pi % 4)
        r(f"v_exp_f32 v{T(2*pi)}, v{S(par,qt)+k}")
        if pi > 0:
            q0 = (pi - 1) // 4
            r(f"v_cvt_pk_bf16_f32 v{P(par,q0)+(pi-1)%4}, v{T(2*pi-2)}, v{T(2*pi-1)}")
        r(f"v_exp_f32 v{T(2*pi+1)}, v{S(par,qt)+k+1}")
        if pi % 4 == 1 and pi > 1:
            q0 = pi // 4 - 1
            r(f"{MF} {vr(LS(q0),4)}, {vr(vONE,4)}, {vr(P(par,q0),4)}, 0")
    r.atom(f"s_nop 0\nv_cvt_pk_bf16_f32 v{P(par,3)+3}, v{T(30)}, v{T(31)}")
    r.atom(f"s_nop 1\n{MF} {vr(LS(3),4)}, {vr(vONE,4)}, {vr(P(par,3),4)}, 0")
    return r.items

def check_items(site):
    r = Rec()
    r(f"v_add_f32 v{vCK}, v{LS(0)}, v{LS(1)}")
    r(f"v_add_f32 v{vCK}, v{vCK}, v{LS(2)}")
    a = r.items; r = Rec()
    r(f"v_add_f32 v{vCK}, v{vCK}, v{LS(3)}")
    r(f"v_cmp_nge_f32 vcc, s{sTHR}, v{vCK}")
    r.atom(f"s_cbranch_vccnz L_fb_{site}\nL_fbret_{site}:")
    b = r.items; r = Rec()
    for qt in range(4): r(f"v_add_f32 v{vL+qt}, v{vL+qt}, v{LS(qt)}")
    return a, b, r.items

def qk_mfmas(cfg, par, first_c=None):
    mf = []
    for s in range(4):
        order = [(kt, qt) for qt in range(4) for kt in range(2)] if (cfg.qk_b or s == 3) else [(kt, qt) for kt in range(2) for qt in range(4)]
        for kt, qt in order:
            d = vr(S(par, qt) + 4 * kt, 4)
            c = d if s else (first_c if first_c is not None else vr(NEGM(qt), 4))
            mf.append(f"{MF} {d}, {ar(KF(kt,s),4)}, {vr(Q(qt,s),4)}, {c}")
    return mf

def pv_mfmas(cfg, par, border=None):
    border = cfg.pv_b if border is None else border
    order = [(t, qt) for qt in range(4) for t in range(8)] if border else [(t, qt) for t in range(8) for qt in range(4)]
    return [f"{MF} {ar(O(qt,t),4)}, {ar(VF(t),4)}, {vr(P(par,qt),4)}, {ar(O(qt,t),4)}" for t, qt in order]

def rowmax4(g, par, dst, tmp):
    for qt in range(4):
        s = S(par, qt)
        g(f"v_max3_f32 v{dst+qt}, v{s}, v{s+1}, v{s+2}")
        g(f"v_max3_f32 v{tmp+qt}, v{s+3}, v{s+4}, v{s+5}")
    for qt in range(4):
        s = S(par, qt)
        g(f"v_max3_f32 v{dst+qt}, v{dst+qt}, v{s+6}, v{s+7}")
    for qt in range(4): g(f"v_max_f32 v{dst+qt}, v{dst+qt}, v{tmp+qt}")
    for op in ("v_permlane16_swap_b32", "v_permlane32_swap_b32"):
        for qt in range(4): g(f"v_mov_b32 v{tmp+qt}, v{dst+qt}")
        g("s_nop 1")
        for qt in range(4): g(f"{op} v{dst+qt}, v{tmp+qt}")
        for qt in range(4): g(f"v_max_f32 v{dst+qt}, v{dst+qt}, v{tmp+qt}")

def attention(g, cfg, late, plan, wvis, wread):
    SP = cfg.sm_split
    stamp(g, cfg, "qdone", wait=True)
    lr = Rec()
    for name in late: load(lr, cfg, name)
    lr = lr.items
    for p in range(63, -1, -1):
        src = 128 + 2 * p
        if p % 6 == 0 and lr:
            while lr[0][0] != "v": play(g, lr.pop(0))
            play(g, lr.pop(0))
        g(f"v_pk_mul_f32 v[{src}:{src+1}], v[{src}:{src+1}], s[{sSC}:{sSC+1}]")
        if p < 63:
            g(f"v_cvt_pk_bf16_f32 v{192+p+1}, v{src+2}, v{src+3}")
    g(f"v_cvt_pk_bf16_f32 v192, v128, v129\ns_nop 0")
    if cfg.qdump:
        g(f"s_add_u32 s{sT0}, s{sST}, {WS_QDUMP}\nv_lshlrev_b32 v10, 4, v{vLANE}")
        for f in range(16):
            if f % 4 == 0 and f: g(f"s_add_u32 s{sT0}, s{sT0}, 4096")
            g(f"buffer_store_dwordx4 v[{192+4*f}:{195+4*f}], v10, s[{SWS}:{SWS+3}], s{sT0} offen offset:{1024*(f%4)}")
        g("s_waitcnt vmcnt(0)")
    def side(b):
        r = Rec()
        for name in plan.get(b, []): load(r, cfg, name)
        return r.items
    g.wait_all(vm=False, lg=True)
    stamp(g, cfg, "qconv")
    kr = kfrag_reads(1)
    emit_block(g, qk_mfmas(cfg, 0, first_c="0"), [(side(0), 0, 28, 40)] + [(kr[2*i:2*i+2], 8*i+7, min(31, 8*i+8)) for i in range(4)])
    g("s_nop 5")
    rowmax4(g, 0, vT, vT + 4)
    for qt in range(4):
        for k in range(8): g(f"v_sub_f32 v{S(0,qt)+k}, v{S(0,qt)+k}, v{vT+qt}")
        for k in range(4): g(f"v_sub_f32 v{NEGM(qt)+k}, 0, v{vT+qt}")
    pend_l = []
    for i in range(32):
        par = i % 2
        j = i // 2
        sm = softmax_items(par)
        ck = check_items(i)
        if i == 0:
            for it in sm[:SP]: play(g, it)
            g.wait_all(vm=False, lg=True)
            rb = rebase_items("K", TP["K1"])
            emit_block(g, qk_mfmas(cfg, 1), [(vfrag_reads(0), 0, 26), (sm[SP:], 0, 25), (side(1), 0, 31, 40), (ck[0], 26, 27), (rb, 20, 29), (ck[1], 30, 31)], name="w0")
            pend_l = ck[2]
            continue
        extra = []
        if par == 0:
            need = [f"K{j+1}", f"V{j}"]
            need += wvis.get(j, [])
            g.wait_vm(*need)
            g.wait_all(vm=False, lg=True)
            g("s_barrier")
            stamp(g, cfg, f"it{j-1}")
        else:
            g.wait_all(vm=False, lg=True)
        if i in wread:
            its = []
            for st in wread[i]: its += wo_read(st)
            extra.append((its, 2, 56 if i < 31 else 30))
        if i == 31:
            mf = pv_mfmas(cfg, par ^ 1)
            emit_block(g, mf, [(pend_l, 0, 2), (sm[:cfg.sp31], cfg.lead, 31), (side(2 * i), 0, 31, 40)] + extra, name="w31")
            return sm[cfg.sp31:], ck
        rbv = rebase_items("V", TP[f"V{j}"])
        kr = kfrag_reads(i + 1)
        vrd = vfrag_reads(i)
        rbk = rebase_items("K", TP[f"K{(i+2)//2}"]) if i + 2 <= 31 else []
        mf = pv_mfmas(cfg, par ^ 1) + qk_mfmas(cfg, par ^ 1)
        wk = [([("wl", (f"kf{i+1}_3",), None)], 31, 31)]
        emit_block(g, mf, [(pend_l, 0, 2), (kr, 0, 24), (rbv, 3, 30), (sm, cfg.lead, 57), (side(2 * i), 1, 31, 40), (side(2 * i + 1), 32, 63, 40),
                           (vrd, 32, 58), (rbk, 32, 61), (ck[0], 58, 59), ([("i", "s_nop 0", None)] * 2, 60, 61), (ck[1], 62, 63)] + wk + extra, name=f"w{i}")
        pend_l = ck[2]

HOMES = [448 + 8 * i for i in range(8)] + [192 + 8 * i for i in range(8)] + [384 + 8 * i for i in range(8)] + [256 + 8 * i for i in range(8)]
def WOF(st, nt): return HOMES[st] + 4 * nt
def wo_read(st):
    pos = TP[f"W{st//2}"] + (st % 2) * 8192
    a = pos // (64 * K)
    r = Rec()
    for nt in range(2):
        for hf in range(2):
            r.ds(f"ds_read_b64_tr_b16 {rr(WOF(st,nt)+2*hf,2)}, v{vWR+a} offset:{pos - a*64*K + hf*4096 + nt*8}", f"wr{st}")
    return r.items

def tail_setup(g, cfg, part):
    if part == 0:
        g.atom(f"""s_lshl_b32 s{sT2}, s{sKG}, 20
        s_lshl_b32 s{sT1}, s{sCB}, 8
        s_add_u32 s{sT2}, s{sT2}, s{sT1}""")
        g.atom(f"s_add_u32 s{SWO}, s{SWO}, s{sT2}\ns_addc_u32 s{SWO+1}, s{SWO+1}, 0")
        g(f"s_sub_u32 s{SWO+2}, {K*K}, s{sT1}")
        g(f"v_lshl_add_u32 v{vOW}, v3, 10, v9")
        for n in range(1, 4): g(f"v_add_u32 v{vOW+n}, {3072*n}, v{vOW}")
        g(f"""
        s_lshl_b32 s{sXS}, s{sRW}, 17
        s_lshl_b32 s{sT1}, s{sWAVE}, 14
        s_add_u32 s{sXS}, s{sXS}, s{sT1}
        v_lshl_add_u32 v10, v3, 2, v7
        v_lshlrev_b32 v10, 8, v10
        v_xor_b32 v11, s{sWAVE}, v7
        v_lshl_add_u32 v10, v11, 6, v10
        v_lshl_add_u32 v{vWR}, v12, 4, v10
        v_add_u32 v{vWR+1}, {64*K}, v{vWR}
        v_add_u32 v{vWR+2}, {128*K}, v{vWR}
        v_mov_b32 v{vZ}, 0
        """)
    elif part == 1:
        g(f"""
        s_add_u32 s{sT2}, s{sRW}, s{sWAVE}
        v_and_b32 v10, 4, v{vLANE}
        v_add_u32 v10, s{sT2}, v10
        v_and_b32 v10, 7, v10
        v_bfe_u32 v11, v{vLANE}, 1, 1
        v_lshl_add_u32 v10, v10, 2, v11
        v_bfe_u32 v11, v{vLANE}, 3, 1
        v_lshl_add_u32 v10, v10, 1, v11
        v_and_b32 v11, 1, v{vLANE}
        v_lshlrev_b32 v11, 2, v11
        v_lshl_add_u32 v{vFA}, v10, 7, v11
        s_lshl_b32 s{sT2}, s{sB}, 2
        s_add_u32 s{sT2}, s{sT2}, s{sKG}
        s_lshl_b32 s{sOB}, s{sT2}, 19
        s_lshl_b32 s{sT1}, s{sRB}, 15
        s_add_u32 s{sOB}, s{sOB}, s{sT1}
        s_add_u32 s{sT1}, s{sRW}, s{sWAVE}
        s_and_b32 s{sT1}, s{sT1}, 7
        s_lshl_b32 s{sT1}, s{sT1}, 16
        s_xor_b32 s{sOKV}, s{sT1}, 0x40000
        s_add_u32 s{sOKV}, s{sOKV}, s{sOB}
        s_add_u32 s{sOB}, s{sOB}, s{sT1}
        s_lshl_b32 s{sT2}, s{sT2}, 5
        s_lshl_b32 s{sT1}, s{sRB}, 1
        s_add_u32 s{sT2}, s{sT2}, s{sT1}
        s_mul_i32 s{sT2}, s{sT2}, {FS}
        s_add_u32 s{sFC1}, s{sT2}, {WS_FLAGS}
        """)
    else:
        g(f"""
        s_mov_b32 s{sRDY}, 0
        s_mov_b32 s{sSPIN}, 0
        s_lshl_b32 s{sOUTB}, s{sB}, 18
        s_lshl_b32 s{sT2}, s{sRB}, 17
        s_add_u32 s{sOUTB}, s{sOUTB}, s{sT2}
        s_lshr_b32 s{sT2}, s{sOWN}, 1
        s_lshl_b32 s{sT2}, s{sT2}, 16
        s_add_u32 s{sOUTB}, s{sOUTB}, s{sT2}
        s_and_b32 s{sT2}, s{sOWN}, 1
        s_lshl_b32 s{sT2}, s{sT2}, 14
        s_add_u32 s{sOUTB}, s{sOUTB}, s{sT2}
        s_lshl_b32 s{sT2}, s{sCB}, 8
        s_add_u32 s{sOUTB}, s{sOUTB}, s{sT2}
        s_lshl_b32 s{sT2}, s{sWAVE}, 6
        s_add_u32 s{sOUTB}, s{sOUTB}, s{sT2}
        """)

def stubs(g, cfg):
    for i in range(32):
        g.label(f"L_fb_{i}")
        g(f"s_call_b64 s[86:87], L_rescale{i % 2}\ns_branch L_fbret_{i}")

def fallback(g, par):
    g.label(f"L_rescale{par}")
    g("s_nop 15\ns_nop 15")
    d, f = vT, vT + 4
    rowmax4(g, par, d, f)
    for qt in range(4):
        g(f"v_max_f32 v{d+qt}, 0, v{d+qt}")
        g(f"v_sub_f32 v{f+qt}, 0, v{d+qt}")
        g(f"v_exp_f32 v{f+qt}, v{f+qt}")
    for qt in range(4):
        for k in range(4): g(f"v_sub_f32 v{NEGM(qt)+k}, v{NEGM(qt)+k}, v{d+qt}")
        for k in range(8):
            g(f"v_sub_f32 v{S(par,qt)+k}, v{S(par,qt)+k}, v{d+qt}")
            g(f"v_sub_f32 v{S(par^1,qt)+k}, v{S(par^1,qt)+k}, v{d+qt}")
        g(f"v_mul_f32 v{vL+qt}, v{vL+qt}, v{f+qt}")
        for k in range(0, 32, 4):
            for i in range(4): g(f"v_accvgpr_read_b32 v{LS(0)+i}, a{32*qt+k+i}")
            for i in range(4): g(f"v_mul_f32 v{LS(0)+i}, v{LS(0)+i}, v{f+qt}")
            for i in range(4): g(f"v_accvgpr_write_b32 a{32*qt+k+i}, v{LS(0)+i}")
    for it in softmax_items(par): play(g, it)
    g("s_nop 15")
    g("s_setpc_b64 s[86:87]")

def tail(g, cfg, smrest, cc):
    for it in vfrag_reads(31): play(g, it)
    for it in smrest: play(g, it)
    for it in cc[0]: play(g, it)
    g.wait_vm("non")
    g.label("L_cnt")
    g(f"v_readfirstlane_b32 s{sT1}, v{vFL}\nv_readfirstlane_b32 s{sNON}, v{vFL+1}\ns_cmp_ge_u32 s{sT1}, 32\ns_cbranch_scc0 L_cntspin")
    g.label("L_cntok")
    g("s_nop 1")
    for it in cc[1] + cc[2]: play(g, it)
    inv = [20, 22, 24, 26]
    g.wait_all(vm=False, lg=True)
    g("s_barrier")
    for qt in range(4): g(f"v_rcp_f32 v{inv[qt]}, v{vL+qt}")
    g(f"v_mov_b32 v{vNON}, s{sNON}")
    stamp(g, cfg, "attn_end")
    def pk(f): return (160 + 4 * f) if f < 8 else (96 + 4 * (f - 8))
    def ostore(r, f):
        if f % 4 == 0 and f: r(f"s_add_u32 s{sST}, s{sST}, 4096")
        r.vmem(f"buffer_store_dwordx4 v[{pk(f)}:{pk(f)+3}], v{vOL}, s[{SWS}:{SWS+3}], s{sST} offen offset:{1024*(f%4)} sc1", f"st{f//8}")
    def norm(f):
        r = Rec()
        qt, s = f // 4, f % 4
        src = O(qt, 2 * s)
        tmp = 128 + 8 * (f % 4)
        for i in range(8): r(f"v_accvgpr_read_b32 v{tmp+i}, a{src+i}")
        if f < cfg.npk:
            for i in range(8): r(f"v_mul_f32 v{tmp+i}, v{tmp+i}, v{inv[qt]}")
        else:
            for i in range(0, 8, 2): r(f"v_pk_mul_f32 v[{tmp+i}:{tmp+i+1}], v[{tmp+i}:{tmp+i+1}], v[{inv[qt]}:{inv[qt]+1}] op_sel_hi:[1,0]")
        for i in range(0, 8, 2): r(f"v_cvt_pk_bf16_f32 v{pk(f)+i//2}, v{tmp+i}, v{tmp+i+1}")
        if f < 8: ostore(r, f)
        return r.items
    def flag(r, ph):
        r.wv(f"st{ph}")
        r.items.append(("v", f"s_mov_b64 exec, 1\nbuffer_store_dword v{vNON}, v{vZ}, s[{SWS}:{SWS+3}], s{sFO} offen offset:{4*ph} {cfg.f0fl}", "flag"))
        r.items.append(("v", f"buffer_store_dword v{vNON}, v{vZ}, s[{SWS}:{SWS+3}], s{sFO} offen offset:{128+4*ph} sc1\ns_mov_b64 exec, -1", "flag"))
    mf = pv_mfmas(cfg, 1, border=True)
    nm = [it for f in range(8) for it in norm(f)]
    k = 0
    for i, m in enumerate(mf):
        g(m)
        if i >= 9:
            for it in nm[k:k + cfg.nper]: play(g, it)
            k += cfg.nper
    for it in nm[k:]: play(g, it)
    stamp(g, cfg, "storedA", wait=True)
    for f in range(8, 16):
        for it in norm(f): play(g, it)
    g.wait_vm("W11")
    g("s_barrier")
    for st in range(12, 24):
        if st == cfg.fa_st:
            r = Rec(); flag(r, 0)
            for it in r.items: play(g, it)
            stamp(g, cfg, "ost_done", wait=True)
        for it in wo_read(st): play(g, it)
    if cfg.fa_st >= 24:
        r = Rec(); flag(r, 0)
        for it in r.items: play(g, it)
        stamp(g, cfg, "ost_done", wait=True)
    g(f"v_mov_b32 v{vBR}, v{vOL}\nv_add_u32 v{vBR+1}, {64*K}, v{vOL}\nv_add_u32 v{vBR+2}, {128*K}, v{vOL}")
    def apoll(r, tag):
        r.vmem(f"buffer_load_dword v{vFL+1}, v{vFA}, s[{SWS}:{SWS+3}], s{sFC1} offen sc1", tag)
    def acheck(r, tag):
        r.wv(tag)
        r.atom(f"v_cmp_eq_u32 vcc, v{vNON}, v{vFL+1}\ns_lshr_b32 s{sRDY}, vcc_lo, 8\ns_or_b32 s{sRDY}, s{sRDY}, vcc_lo")
    for tau in range(12, 16):
        if tau == cfg.ap_tau: apoll(g, "ap0")
        wo_dma(g, tau)
    if cfg.ap_tau >= 16: apoll(g, "ap0")
    g.wait_all(vm=False, lg=True)
    g("s_barrier")
    stamp(g, cfg, "wo_done")
    r = Rec(); acheck(r, "ap0")
    for it in r.items: play(g, it)
    UNITS = {"a": [(0, 1), (0, 2), (0, 3), (1, 1), (1, 2), (1, 3), (0, 0), (1, 0)],
             "b": [(0, 1), (0, 2), (0, 3), (0, 0), (1, 1), (1, 2), (1, 3), (1, 0)]}[cfg.uord]
    RING = [(128 * K, 144 * K)] + [(TP[f"K{j}"], TP[f"V{j}"]) for j in (12, 14, 13, 15)]
    def o_dma(rec, u):
        ph, d = UNITS[u]
        rec.atom(f"""s_add_u32 s{sT2}, s{sOWN}, {d}
        s_and_b32 s{sT3}, s{sT2}, 2
        s_lshl_b32 s{sT3}, {0x11 << ph}, s{sT3}""")
        rec.atom(f"""s_andn2_b32 s{sT4}, s{sT3}, s{sRDY}
        s_cbranch_scc1 L_poll{u}
        L_ok{u}:""")
        if u == 0: stamp(g, cfg, "poll_ok", wait=True)
        rec.atom(f"""s_and_b32 s{sT3}, s{sT2}, 2
        s_lshl_b32 s{sT3}, s{sT3}, 13
        s_and_b32 s{sT2}, s{sT2}, 1""")
        rec.atom(f"""s_lshl_b32 s{sT2}, s{sT2}, 12
        s_add_u32 s{sT2}, s{sT2}, s{sT3}
        s_add_u32 s{sT2}, s{sT2}, {ph * 8192}""")
        for grp in range(2):
            rec(f"s_add_u32 m0, s{sW4K}, {RING[u % 5][grp]}")
            rec(f"s_add_u32 s{sT4}, s{sT2}, s{(sOB, sOKV)[grp]}")
            dma_group(rec, SWS, [vOL] * 4, sT4, f"o{u}", " sc1")
    class Direct:
        def __init__(s, g): s.g = g
        def __call__(s, x): s.g(x)
        def atom(s, x): s.g(x)
        def vmem(s, x, t): s.g.vmem(x, t)
    NBUF = 10
    BF = [256 + 64 + 4 * i for i in range(NBUF)]
    accs = {}
    rot = 0
    for u, (ph, d) in enumerate(UNITS):
        if d == 0: accs[u] = 144 + 8 * ph
        else: accs[u] = 128 + 8 * (rot % 2); rot += 1
    nfr = 256
    def b_read(idx):
        u, st = idx // 32, idx % 32
        pos = RING[u % 5][st // 16] + (st % 16) * 1024
        a = pos // (64 * K)
        return ("d", f"ds_read_b128 {rr(BF[idx % NBUF],4)}, v{vBR+a} offset:{pos - a*64*K}", f"b{idx}")
    o_dma(Direct(g), 0); o_dma(Direct(g), 1)
    for f in range(8, 8 + cfg.nb_pre): ostore(g, f)
    AHEAD = NBUF - 2
    BARPOS = 32 - AHEAD
    MSG = [160 + 4 * i for i in range(8)] + [64]
    for q in MSG: g(f"v_mov_b32 v{q+3}, v{vNON}")
    g.wait_vm("o0")
    g.wait_all(vm=False, lg=True)
    g("s_barrier")
    for idx in range(AHEAD): play(g, b_read(idx))
    g.wait_lg("b1")
    def slot(quads, p, k): return quads[3 * p + k // 3] + k % 3
    def ppack(u):
        ph, d = UNITS[u]; p = d - 1
        r = Rec()
        for k in range(4): r(f"v_cvt_pk_bf16_f32 v{slot(MSG, p, 4*ph+k)}, v{accs[u]+2*k}, v{accs[u]+2*k+1}")
        if ph == 1:
            r(f"s_movk_i32 s{sT1}, {p * 3072}")
            for k in range(3):
                q = MSG[3 * p + k]
                r.vmem(f"buffer_store_dwordx4 v[{q}:{q+3}], v{vOL}, s[{SZ}:{SZ+3}], s{sT1} offen offset:{1024*k} sc1", f"ps{p}")
        return r.items
    PL = [68 + 4 * i for i in range(9)]
    def pload(r, p):
        r(f"s_add_u32 s{sT0}, s{sKG}, {3 - p}\ns_and_b32 s{sT0}, s{sT0}, 3\ns_mul_i32 s{sT0}, s{sT0}, {4 * 9216}\ns_add_u32 s{sT0}, s{sT0}, s{sPB}\ns_add_u32 s{sT0}, s{sT0}, {p * 3072}")
        for k in range(3):
            q = PL[3 * p + k]
            r.vmem(f"buffer_load_dwordx4 v[{q}:{q+3}], v{vOL}, s[{SWS}:{SWS+3}], s{sT0} offen offset:{1024*k} sc1", f"pl{p}")
    firstB = [u for u, x in enumerate(UNITS) if x[0] == 1][0]
    req = {u: u - 2 for u in range(2, 8)}
    req[firstB] = firstB - cfg.blead
    for u in range(8):
        stamp(g, cfg, f"u{u}", wait=True)
        mf = []; streams = []
        for st in range(32):
            idx = 32 * u + st
            for nt in range(2):
                d = vr(accs[u] + 4 * nt, 4)
                mf.append(f"{MF} {d}, {rr(WOF(st,nt),4)}, {rr(BF[idx % NBUF],4)}, {'0' if st == 0 else d}")
            if idx + AHEAD < nfr: streams.append(([b_read(idx + AHEAD)], 2 * st, 2 * st))
            if st % 2 == 1 and idx + 2 < nfr: streams.append(([("wl", (f"b{idx+2}",), None)], 2 * st + 1, 2 * st + 1))
            if st == BARPOS - 1 and u < 7:
                streams.append(([("wv", (f"o{u+1}",), None), ("i", "s_barrier", None)], 2 * st + 1, 2 * st + 1))
        if u >= 1 and UNITS[u - 1][1] != 0: streams.append((ppack(u - 1), 5, 22, 40))
        mine = [c for c in range(2, 8) if req[c] == u]
        lo = 2
        if u == cfg.fb_u:
            r = Rec(); flag(r, 1)
            a = r.items
            streams.append(([a[0], ("v2", a[1][1] + "\n" + a[2][1], "flag")], cfg.fb_g, cfg.fb_g))
        assert (req[firstB], cfg.ac_g) > (cfg.fb_u, cfg.fb_g) and (req[firstB], cfg.ac_g) > (cfg.ap_u, cfg.ap_g)
        side = []
        if u == 0:
            its = []
            for st in range(24, 32): its += wo_read(st)
            streams.append((its, 0, 38))
            r = Rec()
            for f in range(8 + cfg.nb_pre, 16): ostore(r, f)
            side += r.items
        if u == cfg.ap_u:
            r = Rec(); apoll(r, "ap1"); streams.append((r.items, cfg.ap_g, cfg.ap_g))
        if firstB in mine:
            assert mine[0] == firstB
            r = Rec(); acheck(r, "ap1"); streams.append((r.items, cfg.ac_g, cfg.ac_g))
            lo = cfg.ac_g + 1
        for c in mine:
            r = Rec(); o_dma(r, c); side += r.items
        hi = 62 if (u + 1) not in mine else None
        if hi is None:
            r = Rec(); o_dma_len = len(side) // len(mine)
            streams.append((side[:o_dma_len], lo, min(lo + 30, 2 * BARPOS - 3), 60))
            streams.append((side[o_dma_len:], min(lo + 31, 2 * BARPOS - 2), 63, 60))
        else:
            streams.append((side, lo, 62, 40))
        if u == 7:
            r = Rec()
            r(f"v_lshlrev_b32 v5, 10, v2\nv_lshl_add_u32 v5, v3, 4, v5")
            pload(r, 0); pload(r, 1); pload(r, 2); streams.append((r.items, cfg.pl_at, 62, 40))
        emit_block(g, mf, streams, name=f"u{u}", dma_gap=cfg.tgap)
    stamp(g, cfg, "gemm_done", wait=True)
    g.label("L_pp")
    g("s_waitcnt vmcnt(0)")
    t = [q + 3 for q in PL]
    g(f"v_xor_b32 v10, v{vNON}, v{t[0]}")
    for i in range(1, 9, 2):
        g(f"v_xor_b32 v11, v{vNON}, v{t[i]}\nv_xor_b32 v12, v{vNON}, v{t[i+1]}\nv_or3_b32 v10, v10, v11, v12")
    g("v_cmp_ne_u32 vcc, 0, v10\ns_cbranch_vccnz L_ppspin")
    g.label("L_pp_ok")
    g.vm = []
    stamp(g, cfg, "poll2_ok", wait=True)
    for p in range(3):
        for k in range(8):
            q = slot(PL, p, k)
            g(f"v_lshlrev_b32 v{104+2*k}, 16, v{q}\nv_and_b32 v{105+2*k}, 0xffff0000, v{q}")
        for i in range(16): g(f"v_add_f32 v{144+i}, v{144+i}, v{104+i}")
    for i in range(8): g(f"v_cvt_pk_bf16_f32 v{128+i}, v{144+2*i}, v{145+2*i}")
    global PPSPIN
    r = Rec()
    for p in range(3): pload(r, p)
    PPSPIN = [it[1] for it in r.items]
    g(f"s_add_u32 s{sT0}, s{sOUTB}, 32768")
    g(f"buffer_store_dwordx4 v[128:131], v5, s[{SOUT}:{SOUT+3}], s{sOUTB} offen {cfg.outfl.replace('_', ' ')}")
    g(f"buffer_store_dwordx4 v[132:135], v5, s[{SOUT}:{SOUT+3}], s{sT0} offen {cfg.outfl.replace('_', ' ')}")
    if cfg.diag:
        g("s_waitcnt vmcnt(0)")
        stamp(g, cfg, "end", wait=True)
        stamp(g, cfg, "x", wait=True, record=False)
        g(f"s_lshl_b32 s{sT0}, s2, 2\ns_add_u32 s{sT0}, s{sT0}, s{sWAVE}\ns_lshl_b32 s{sT0}, s{sT0}, 8\ns_add_u32 s{sT0}, s{sT0}, {WS_STAMP}")
        g(f"v_lshlrev_b32 v10, 2, v{vLANE}")
        g(f"buffer_store_dword v{vST}, v10, s[{SWS}:{SWS+3}], s{sT0} offen")
    g.label("L_end")
    g("s_endpgm")

def spins(g, cfg):
    g.label("L_cntspin")
    g(f"""
    s_add_u32 s{sSPIN}, s{sSPIN}, 1
    s_cmp_gt_u32 s{sSPIN}, {SPIN_MAX}
    s_cbranch_scc1 L_cntok
    s_sleep 2
    buffer_load_dwordx2 v[{vFL}:{vFL+1}], v{vZ}, s[{SDBG}:{SDBG+3}], s{sCN} offen sc1
    s_waitcnt vmcnt(0)
    s_branch L_cnt
    """)
    g.label("L_ppspin")
    g(f"s_add_u32 s{sSPIN}, s{sSPIN}, 1\ns_cmp_gt_u32 s{sSPIN}, {SPIN_MAX}\ns_cbranch_scc1 L_pp_ok")
    for l in PPSPIN: g(l)
    g("s_branch L_pp")
    for u in range(8):
        g.label(f"L_poll{u}")
        g(f"""
        buffer_load_dword v{vFL}, v{vFA}, s[{SWS}:{SWS+3}], s{sFC1} offen {cfg.pfl.replace('_', ' ')}
        s_add_u32 s{sSPIN}, s{sSPIN}, 1
        s_waitcnt vmcnt(0)
        v_cmp_eq_u32 vcc, v{vNON}, v{vFL}
        s_cmp_gt_u32 s{sSPIN}, {SPIN_MAX}
        s_cbranch_scc1 L_ok{u}
        s_lshr_b32 s{sRDY}, vcc_lo, 8
        s_or_b32 s{sRDY}, s{sRDY}, vcc_lo
        s_andn2_b32 s{sT4}, s{sT3}, s{sRDY}
        s_cbranch_scc0 L_ok{u}
        s_branch L_poll{u}
        """)

Cfg.npk = 6
Cfg.wnt = 0
Cfg.zfl = 'sc1'
Cfg.ofl = 'sc1'
Cfg.ctouch = True
Cfg.noz = False
Cfg.dfl = 'sc1'
Cfg.ffl = 'sc1'
Cfg.pfl = 'sc1'
Cfg.flag_early = False
Cfg.w0 = 47
Cfg.w1 = 49
Cfg.w2 = 53
Cfg.cblk = [1, 23, 45]
Cfg.nper = 7
Cfg.uord = 'b'
Cfg.blead = 2
Cfg.fb_u = 1
Cfg.fb_g = 40
Cfg.ap_u = 2
Cfg.ap_g = 2
Cfg.ac_g = 30
Cfg.fa_st = 24
Cfg.ap_tau = 14
Cfg.nb_pre = 8
Cfg.v15 = 0
Cfg.pl_at = 20
Cfg.tgap = 3
Cfg.outfl = 'sc1'
Cfg.f0fl = ''
Cfg.bydl = True
Cfg.ring5 = False
Cfg.margin = 5
Cfg.first = 0
Cfg.fast = 2.0
Cfg.knee = 99
Cfg.wrounds = 0
Cfg.wfirst = 49
Cfg.zfirst = 5
Cfg.zstep = 2
Cfg.sp31 = 30
Cfg.pl2_at = 36

def build(cfg):
    g = Gen()
    plan, wvis, wread = make_plan(cfg)
    print("plan:", " ".join(f"{b}:{'+'.join(plan[b])}" for b in sorted(plan)))
    setup(g, cfg)
    late = qproj(g, cfg)
    smrest, ck = attention(g, cfg, late, plan, wvis, wread)
    tail(g, cfg, smrest, ck)
    stubs(g, cfg)
    spins(g, cfg)
    fallback(g, 0); fallback(g, 1)
    g.label("L_textend")
    g(f".if (L_textend - L_code0) < {16384 * (len(cfg.cblk) + 1)}\n.error \"code touch range\"\n.endif")
    errs = check_hazards(g.lines, "lin")
    for e in errs: print("HAZARD", e, file=sys.stderr)
    src = (HEADER + (("; STAMPS " + " ".join(STAMPS) + "\n") if cfg.diag else "") + "; @launch grid=(256,1,1) block=(256,1,1) lds=163840\n"
        '.amdgcn_target "amdgcn-amd-amdhsa--gfx950"\n.text\n'
        f".globl {KNAME}\n.p2align 8\n.type {KNAME},@function\n{KNAME}:\n"
        + g.text() +
        '.section .rodata,"a"\n.p2align 6\n'
        f".amdhsa_kernel {KNAME}\n"
        "  .amdhsa_next_free_vgpr 512\n  .amdhsa_next_free_sgpr 102\n  .amdhsa_accum_offset 256\n"
        "  .amdhsa_group_segment_fixed_size 0\n  .amdhsa_kernarg_size 64\n  .amdhsa_user_sgpr_count 2\n"
        "  .amdhsa_user_sgpr_kernarg_segment_ptr 1\n  .amdhsa_system_sgpr_workgroup_id_x 1\n"
        ".end_amdhsa_kernel\n")
    return src, errs

if __name__ == "__main__":
    cfg = Cfg()
    out = sys.argv[1]
    for kv in sys.argv[2:]:
        k, v = kv.split("=")
        cur = getattr(cfg, k)
        setattr(Cfg, k, bool(eval(v)) if isinstance(cur, bool) else (v if isinstance(cur, str) else type(cur)(eval(v))))
    src, errs = build(cfg)
    assert not errs
    open(out, "w").write(src)
    print(" ".join(f"{n}:{c}" for n, c in REPORT))
    print(f"wrote {out}: {src.count(chr(10))} lines, {len(errs)} hazard findings")
```
